```python
import torch

def _softmax(x, axis=-1):
    return torch.softmax(x, dim=axis)

def _gelu(x):
    return torch.nn.functional.gelu(x, approximate='tanh')

def _silu(x):
    return torch.nn.functional.silu(x)

def _sigmoid(x):
    return torch.sigmoid(x)

def _layernorm(x, axis=-1, eps=1e-05):
    m = x.mean(dim=axis, keepdim=True)
    v = x.var(dim=axis, keepdim=True, unbiased=False)
    return (x - m) / torch.sqrt(v + eps)

def _scatter_add(tgt, idx, src, axis=0):
    return tgt.clone().index_add_(axis, idx, src)

def _segment_sum(src, seg, n):
    out = torch.zeros((n,) + src.shape[1:], dtype=src.dtype)
    return out.index_add_(0, seg, src)

def _pad(x, pw):
    flat = tuple((v for pair in reversed(pw) for v in pair))
    return torch.nn.functional.pad(x, flat)
kernel_name = 'standalone__autoregressive_conv_wavenet__speech'

def setup_inputs():

    _w = lambda a: (lambda t: t.to(torch.bfloat16) if t.is_floating_point() else t)(torch.as_tensor(a))
    B, T, D, K = (2, 16000, 144, 5)
    return {'x': _w((lambda *s: torch.randn(*s, dtype=torch.bfloat16) * 0.1)(B, T, D)), 'w': _w((lambda *s: torch.randn(*s, dtype=torch.bfloat16) * 0.1)(K, D, 2 * D)), 'w_o': _w((lambda *s: torch.randn(*s, dtype=torch.bfloat16) * 0.05)(D, D))}

def reference(x, w, w_o):
    B, T, D = x.shape
    K = w.shape[0]
    dil = 2
    pad = (K - 1) * dil
    xp = _pad(x, ((0, 0), (pad, 0), (0, 0)))
    h = torch.einsum('btc,cd->btd', xp[:, pad:pad + T, :], w[0])
    for i in range(1, K):
        off = pad - i * dil
        h = h + torch.einsum('btc,cd->btd', xp[:, off:off + T, :], w[i])
    f = h[..., :D].clone()
    g = h[..., D:].clone()
    z = torch.tanh(f) * _sigmoid(g)
    return z @ w_o
```

```python
KN = "standalone__autoregressive_conv_wavenet__speech_kernel"
class Asm:
    def __init__(self):
        self.lines = []
    def __call__(self, s):
        for l in s.split("\n"):
            l = l.strip()
            if l: self.lines.append("    " + l if not l.endswith(":") else l)
    def label(self, n): self.lines.append(n + ":")
    def text(self): return "\n".join(self.lines)

def wrap(body, grid, block, lds, vgpr=256, sgpr=102, accum=256, extra_kd=""):
    return f"""; @launch grid=({grid},1,1) block=({block},1,1) lds={lds}
.amdgcn_target "amdgcn-amd-amdhsa--gfx950"
.text
.globl {KN}
.p2align 8
.type {KN},@function
{KN}:
{body}
s_endpgm
.section .rodata,"a"
.p2align 6
.amdhsa_kernel {KN}
  .amdhsa_next_free_vgpr {vgpr}
  .amdhsa_next_free_sgpr {sgpr}
  .amdhsa_accum_offset {accum}
  .amdhsa_group_segment_fixed_size 0
  .amdhsa_kernarg_size 48
  .amdhsa_user_sgpr_count 2
  .amdhsa_user_sgpr_kernarg_segment_ptr 1
  .amdhsa_system_sgpr_workgroup_id_x 1
{extra_kd}.end_amdhsa_kernel
"""

def emit_stamps(a, mode, n, vlane):
    a("s_memrealtime s[42:43]")
    a(f"s_load_dwordx2 s[60:61], s[0:1], {32 if mode=='dbg' else 40}")
    a("s_waitcnt lgkmcnt(0)")
    a(f"s_mov_b32 s62, {256 if mode=='dbg' else 0x1000000}")
    a("s_mov_b32 s63, 0x20000")
    if mode == "dbg": a("s_not_b32 s40, s40")
    a("v_mov_b32 v4, s40")
    a("v_mov_b32 v5, s42")
    for k in range(1, n):
        a(f"s_sub_u32 s{44+2*k}, s{44+2*k}, s44")
        a(f"v_mov_b32 v{5+k}, s{44+2*k}")
    if mode == "dbg":
        a(f"""
        v_mov_b32 v1, 0
        v_cmp_eq_u32 vcc, 0, {vlane}
        s_and_saveexec_b64 s[64:65], vcc
        """)
        for k in range(n+1):
            a(f"buffer_atomic_umax v{4+k}, v1, s[60:63], 0 offen offset:{4*k}")
        a(f"""
        s_lshl_b32 s38, s2, 2
        s_add_u32 s38, s38, s3
        s_cmp_eq_u32 s38, 401
        s_cbranch_scc0 L_nost
        buffer_store_dwordx4 v[4:7], v1, s[60:63], 0 offen offset:32
        buffer_store_dwordx4 v[8:11], v1, s[60:63], 0 offen offset:48
        L_nost:
        s_waitcnt vmcnt(0)
        """)
    else:
        a(f"""
        s_lshl_b32 s38, s2, 2
        s_add_u32 s38, s38, s3
        s_lshl_b32 s38, s38, 5
        v_mov_b32 v1, s38
        v_cmp_eq_u32 vcc, 0, {vlane}
        s_and_saveexec_b64 s[64:65], vcc
        buffer_store_dwordx4 v[4:7], v1, s[60:63], 0 offen
        buffer_store_dwordx4 v[8:11], v1, s[60:63], 0 offen offset:16
        s_waitcnt vmcnt(0)
        """)
```

```python
import sys
from asmlib import *

SLOT = 18432
NRING = 6
XBASE = NRING * SLOT
LDS_BYTES = XBASE + 40960
NSLOTS = 26
LOG2E = 1.4426950408889634
import struct
def f2u(x): return struct.unpack("<I", struct.pack("<f", x))[0]

def gen(stamps=False, warm=True, store_mod=""):
    a = Asm()
    ACC = 16
    def acc(u): return ACC + 4*u
    V = {}
    nxt = [160]
    def valloc(name, n=1, align=1):
        while nxt[0] % align: nxt[0] += 1
        V[name] = nxt[0]; nxt[0] += n
        assert nxt[0] <= 256
        return V[name]
    for nm in ["lane","n","kq","r","c","kq1","kqh","A0","vW","vWO",
               "WEw0","WOw0","WE00","WO00","WEw1","WOw1","WE01","WO01",
               "KEw","KOw","KE0","KO0",
               "XF","XH0","XH1","XH2","XP","XP8","XQ2","XQ3","XQ4","XQ5","XK","XKH",
               "OB0","OB1","ZW","ZR","OUT","OUT8","t0","t1","t2","t3"]:
        valloc(nm)
    valloc("XD", 10)
    valloc("T", 8, 2)
    valloc("Z", 8, 4)
    valloc("Z8", 4, 2)
    valloc("ST", 8, 4)
    v = lambda nm, i=0: f"v{V[nm]+i}"
    def aW(buf, T): return 24*buf + 4*T
    def aF(buf, q): return 48 + 48*buf + 4*q
    def aH(buf, j): return 144 + 24*buf + 4*j
    def aK(p): return 192 + 2*p
    def aKH(pb): return 208 + 2*pb
    def rng(p, b, n): return f"{p}[{b}:{b+n-1}]"
    stamp_n = [0]
    def stamp():
        if stamps:
            k = stamp_n[0]; stamp_n[0] += 1
            a(f"s_memtime s[{44+2*k}:{45+2*k}]")
    if stamps: a("s_memrealtime s[40:41]")
    stamp()
    a(f"""
    s_cmp_ge_u32 s2, 250
    s_cbranch_scc1 L_end
    s_load_dwordx8 s[4:11], s[0:1], 0
    v_lshrrev_b32 {v('t0')}, 6, v0
    v_and_b32 {v('lane')}, 63, v0
    s_cmp_ge_u32 s2, 125
    v_readfirstlane_b32 s3, {v('t0')}
    s_cselect_b32 s31, 125, 0
    s_cselect_b32 s37, 4608000, 0
    s_sub_u32 s31, s2, s31
    s_mul_i32 s31, s31, {128*288}
    s_sub_u32 s38, s31, {8*288}
    """)
    MAGIC = None
    for sh in range(16, 24):
        m = -(-(1 << sh) // 290)
        if all((L*m) >> sh == L//290 for L in range(2560)) and m*2560 < (1<<31) and m < (1<<24):
            MAGIC = (m, sh); break
    m, sh = MAGIC
    for j in range(10):
        if j == 0: a(f"v_mov_b32 {v('t1')}, v0")
        else: a(f"v_add_u32 {v('t1')}, {256*j}, v0")
        a(f"v_mul_u32_u24 {v('t2')}, {m}, {v('t1')}")
        a(f"v_lshrrev_b32 {v('t2')}, {sh-1}, {v('t2')}")
        a(f"v_and_b32 {v('t2')}, -2, {v('t2')}")
        a(f"v_sub_u32 {v('t1')}, {v('t1')}, {v('t2')}")
        a(f"v_lshl_add_u32 {v('XD',j)}, {v('t1')}, 4, s38")
    a(f"""
    s_mul_i32 s28, s3, 4608
    s_and_b32 s30, s3, 1
    s_lshl_b32 s30, s30, 1
    v_xor_b32 {v('t1')}, s30, {v('lane')}
    v_lshl_add_u32 {v('vW')}, {v('t1')}, 4, s28
    v_lshl_add_u32 {v('vWO')}, {v('lane')}, 4, s28
    s_cmp_ge_u32 s3, 2
    s_cselect_b32 s29, {82944-9216}, 0
    s_lshl_b32 s39, s3, 10
    s_add_u32 s39, s39, {XBASE}
    s_lshr_b32 s30, s2, 3
    s_and_b32 s30, s30, 15
    s_lshl_b32 s30, s30, 15
    v_lshl_add_u32 {v('t3')}, v0, 7, s30
    s_waitcnt lgkmcnt(0)
    s_add_u32 s12, s4, s37
    s_addc_u32 s13, s5, 0
    s_mov_b32 s14, 4608000
    s_mov_b32 s15, 0x20000
    s_mov_b32 s16, s6
    s_mov_b32 s17, s7
    s_mov_b32 s18, 414720
    s_mov_b32 s19, 0x20000
    """)
    nvm = 0
    for j in range(10):
        a(f"s_add_u32 m0, s39, {4096*j}")
        a("s_nop 0")
        a(f"buffer_load_dwordx4 {v('XD',j)}, s[12:15], 0 offen lds")
    def slot_src(s):
        if s < 20:
            c, i = divmod(s, 5)
            return "s[16:19]", f"s_mov_b32 s30, {i*82944 + c*32*576}", v('vW')
        if s < 23:
            i = 2*(s-20)
            return "s[16:19]", f"s_add_u32 s30, s29, {i*82944 + 128*576}", v('vW')
        return "s[20:23]", f"s_mov_b32 s30, {(s-23)*SLOT}", v('vWO')
    def dma_slot(s):
        srd, so, vo = slot_src(s)
        rho = s % NRING
        L = [[f"s_add_u32 m0, s28, {rho*SLOT}", so],
             ["s_mov_b32 exec_hi, 0", f"buffer_load_dwordx4 {vo}, {srd}, s30 offen lds", "s_mov_b32 exec_hi, -1"]]
        for k in range(4):
            L.append([f"buffer_load_dwordx4 {vo}, {srd}, s30 offen offset:{512+1024*k} lds"])
        return L
    first = True
    for s in range(NRING):
        for grp in dma_slot(s):
            for ins in grp: a(ins)
        if first and warm:
            a(f"buffer_load_dword {v('t3')}, {v('t3')}, s[16:19], 0 offen")
        first = False
    nwarm = 1 if warm else 0
    a(f"""
    s_mov_b32 s20, s8
    s_mov_b32 s21, s9
    s_mov_b32 s22, 41472
    s_mov_b32 s23, 0x20000
    s_add_u32 s24, s10, s37
    s_addc_u32 s25, s11, 0
    s_mov_b32 s26, 4608000
    s_mov_b32 s27, 0x20000
    s_mov_b32 s32, {f2u(-LOG2E):#x}
    s_mov_b32 s33, {f2u(-LOG2E):#x}
    s_mov_b32 s34, 1.0
    s_mov_b32 s35, 1.0
    s_mov_b32 s36, {f2u(32.0):#x}
    """)
    a(f"""
    v_and_b32 {v('n')}, 15, {v('lane')}
    v_lshrrev_b32 {v('kq')}, 4, {v('lane')}
    v_lshrrev_b32 {v('r')}, 2, {v('n')}
    v_and_b32 {v('c')}, 3, {v('n')}
    v_and_b32 {v('kq1')}, 1, {v('kq')}
    v_lshrrev_b32 {v('kqh')}, 1, {v('kq')}
    v_lshl_add_u32 {v('t0')}, {v('kq')}, 3, {v('r')}
    v_mul_u32_u24 {v('t0')}, 576, {v('t0')}
    v_lshl_add_u32 {v('t0')}, {v('c')}, 3, {v('t0')}
    v_lshlrev_b32 {v('t1')}, 5, {v('kq1')}
    v_add_u32 {v('WE00')}, {v('t0')}, {v('t1')}
    v_sub_u32 {v('WO00')}, {v('t0')}, {v('t1')}
    s_lshl_b32 s30, s3, 6
    v_add_u32 {v('WEw0')}, s30, {v('WE00')}
    v_add_u32 {v('WOw0')}, s30, {v('WO00')}
    v_add_u32 {v('WEw1')}, {3*SLOT}, {v('WEw0')}
    v_add_u32 {v('WOw1')}, {3*SLOT}, {v('WOw0')}
    v_add_u32 {v('WE01')}, {3*SLOT}, {v('WE00')}
    v_add_u32 {v('WO01')}, {3*SLOT}, {v('WO00')}
    v_mul_u32_u24 {v('t1')}, 6912, {v('kqh')}
    v_sub_u32 {v('KEw')}, {v('WEw1')}, {v('t1')}
    v_sub_u32 {v('KOw')}, {v('WOw1')}, {v('t1')}
    v_sub_u32 {v('KE0')}, {v('WE01')}, {v('t1')}
    v_sub_u32 {v('KO0')}, {v('WO01')}, {v('t1')}
    v_add_u32 {v('t0')}, 4, {v('n')}
    v_and_b32 {v('t1')}, 7, {v('t0')}
    v_bfe_u32 {v('t2')}, {v('t0')}, 3, 1
    v_mul_u32_u24 {v('A0')}, {290*16}, {v('t1')}
    v_mul_u32_u24 {v('t0')}, 288, {v('t2')}
    v_add_u32 {v('A0')}, {v('A0')}, {v('t0')}
    v_add_u32 {v('A0')}, {XBASE}, {v('A0')}
    v_lshl_add_u32 {v('t1')}, {v('t1')}, 4, {v('t2')}
    v_mul_u32_u24 {v('t1')}, 288, {v('t1')}
    s_mul_i32 s30, s3, {4*288}
    s_add_u32 s30, s30, s31
    v_add_u32 {v('t1')}, s30, {v('t1')}
    v_lshl_add_u32 {v('t1')}, {v('kqh')}, 4, {v('t1')}
    v_lshl_add_u32 {v('OUT')}, {v('kq1')}, 5, {v('t1')}
    v_mul_u32_u24 {v('t2')}, 576, {v('kq1')}
    v_add_u32 {v('OUT8')}, {v('t1')}, {v('t2')}
    v_lshl_add_u32 {v('XF')}, {v('kq')}, 4, {v('A0')}
    """)
    for jj in range(3):
        a(f"""
        s_lshl_b32 s30, s3, 1
        s_add_u32 s30, s30, {2*jj}
        s_cmp_ge_u32 s30, 8
        s_cselect_b32 s42, 32, 0
        s_mul_i32 s30, s30, 576
        s_add_u32 s30, s30, s42
        v_add_u32 {v('XH%d'%jj)}, s30, {v('XF')}
        """)
    a(f"""
    v_lshl_add_u32 {v('t0')}, {v('kq1')}, 4, {v('A0')}      ; A0 + (kq&1)*16
    v_mul_u32_u24 {v('t1')}, 576, {v('kqh')}
    v_sub_u32 {v('XP')}, {v('t0')}, {v('t1')}
    v_lshlrev_b32 {v('t1')}, 5, {v('kqh')}
    v_sub_u32 {v('XP8')}, {v('XP')}, {v('t1')}
    v_lshl_add_u32 {v('XK')}, {v('kqh')}, 3, {v('t0')}
    s_mul_i32 s30, s3, 1152
    v_add_u32 {v('XKH')}, s30, {v('XK')}
    """)
    for j in range(2, 6):
        a(f"""
        s_lshl_b32 s30, s3, 1
        s_add_u32 s30, s30, {j}
        v_sub_u32 {v('t1')}, s30, {v('kqh')}
        v_lshrrev_b32 {v('t2')}, 3, {v('t1')}
        v_mul_u32_u24 {v('t1')}, 576, {v('t1')}
        v_lshl_add_u32 {v('t1')}, {v('t2')}, 5, {v('t1')}
        v_add_u32 {v('XQ%d'%j)}, {v('t1')}, {v('t0')}
        """)
    a(f"""
    v_lshl_add_u32 {v('t0')}, {v('kq')}, 2, {v('r')}
    v_mul_u32_u24 {v('t0')}, 288, {v('t0')}
    v_lshl_add_u32 {v('OB0')}, {v('c')}, 3, {v('t0')}
    v_add_u32 {v('OB1')}, {5*SLOT}, {v('OB0')}
    ; z exchange
    s_lshl_b32 s30, s3, 13
    s_add_u32 s30, s30, {XBASE}
    v_lshl_add_u32 {v('ZW')}, {v('lane')}, 4, s30
    s_lshl_b32 s30, s3, 11
    s_add_u32 s30, s30, {XBASE}
    v_lshl_add_u32 {v('ZR')}, {v('lane')}, 4, s30
    """)
    TOFF = [("E","w",0), ("O","w",288), ("O","w",32), ("E","w",320), ("E","0",256), ("O","0",544)]
    def wreads(s):
        rho = s % NRING; half = rho // 3; buf = s & 1
        L = []
        for T in range(6):
            eo, wz, off = TOFF[T]
            if s < 22:
                for e2 in range(2):
                    L.append(f"ds_read_b64_tr_b16 {rng('a', aW(buf,T)+2*e2, 2)}, {v('W'+eo+wz+str(half))} offset:{(rho%3)*SLOT + e2*2304 + off}")
            else:
                assert half == 1
                L.append(f"ds_read_b64_tr_b16 {rng('a', aW(buf,T), 2)}, {v('K'+eo+wz)} offset:{(rho%3)*SLOT + off}")
        return L
    def xreads(c):
        buf = c & 1
        L = []
        if c < 4:
            order = list(range(4,12)) + [3,2,1,0]
            for q in order:
                L.append(f"ds_read_b128 {rng('a', aF(buf,q), 4)}, {v('XF')} offset:{q*576 + (32 if q>=8 else 0) + c*64}")
            for j in [4,5,3,2,1,0]:
                L.append(f"ds_read_b128 {rng('a', aH(buf,j), 4)}, {v('XH%d'%(j//2))} offset:{(j&1)*576 + c*64}")
        else:
            for q in range(2,12):
                L.append(f"ds_read_b128 {rng('a', aF(buf,q), 4)}, {v('XP8' if q==8 else 'XP')} offset:{256 + q*576 + (32 if q>=8 else 0)}")
            for j in range(2,6):
                L.append(f"ds_read_b128 {rng('a', aH(buf,j), 4)}, {v('XQ%d'%j)} offset:256")
            for p in range(8):
                L.append(f"ds_read_b64 {rng('a', aK(p), 2)}, {v('XK')} offset:{256 + p*576}")
            for pb in range(2):
                L.append(f"ds_read_b64 {rng('a', aKH(pb), 2)}, {v('XKH')} offset:{256 + pb*576}")
        return L
    def mfmas(s):
        buf = s & 1
        L = []
        if s < 20: c, i = divmod(s, 5)
        else: c, i = 4, 2*(s-20)
        xb = c & 1
        for T in range(6):
            for p in range(8 if T < 4 else 2):
                u = 8*T + p if T < 4 else 32 + 2*(T-4) + p
                D = rng('v', acc(u), 4)
                C = "0" if s == 0 else D
                if s < 22:
                    B = aF(xb, p - i + 4) if T < 4 else aH(xb, p - i + 4)
                    L.append(f"v_mfma_f32_16x16x32_bf16 {D}, {rng('a',aW(buf,T),4)}, {rng('a',B,4)}, {C}")
                else:
                    B = aK(p) if T < 4 else aKH(p)
                    L.append(f"v_mfma_f32_16x16x16_bf16 {D}, {rng('a',aW(buf,T),2)}, {rng('a',B,2)}, {C}")
        return L
    a(f"s_waitcnt vmcnt({25 + nwarm})")
    a("s_barrier")
    stamp()
    for ins in wreads(0): a(ins)
    for ins in xreads(0): a(ins)
    for s in range(23):
        issued = min(s + 5, NSLOTS - 1)
        need = s + 1 if s < 22 else NSLOTS - 1
        nout = 5 * (issued - need)
        a(f"s_waitcnt vmcnt({nout}) lgkmcnt(0)")
        a("s_barrier")
        groups = []
        if s + 6 < NSLOTS: groups += dma_slot(s + 6)
        rd = []
        if s + 1 <= 22: rd += wreads(s + 1)
        if s < 20:
            c, i = divmod(s, 5)
            xr = xreads(c + 1)
            n = len(xr)
            rd += xr[(i*n)//5 : ((i+1)*n)//5]
        fill = []
        g = list(groups); r_ = [[x] for x in rd]
        while g or r_:
            if r_: fill.append(r_.pop(0))
            if r_: fill.append(r_.pop(0))
            if g: fill.append(g.pop(0))
        M = mfmas(s)
        assert len(fill) <= 30, len(fill)
        for k, mm in enumerate(M):
            a(mm)
            if k < len(fill):
                for ins in fill[k]: a(ins)
    stamp()
    wo_reads = []
    def aO(ups, kap): return 18*ups + 4*kap
    for ups in range(9):
        for kap in range(4):
            for e2 in range(2):
                if kap < 2: base, off = v('OB1'), kap*9216 + e2*4608 + ups*32
                else: base, off = v('OB0'), (kap-2)*9216 + e2*4608 + ups*32
                wo_reads.append(f"ds_read_b64_tr_b16 {rng('a', aO(ups,kap)+2*e2, 2)}, {base} offset:{off}")
        wo_reads.append(f"ds_read_b64_tr_b16 {rng('a', aO(ups,4), 2)}, {v('OB0')} offset:{SLOT + ups*32}")
    a("s_nop 7")
    def act(pairs, dst):
        L = []
        P = [(F+2*h, G+2*h) for (F,G) in pairs for h in range(2)]
        for (F,G) in P:
            L.append(f"v_pk_mul_f32 v[{F}:{F+1}], v[{F}:{F+1}], s[32:33]")
        for (F,G) in P:
            L.append(f"v_pk_mul_f32 v[{G}:{G+1}], v[{G}:{G+1}], s[32:33]")
        for (F,G) in P:
            L.append(f"v_min_f32 v{F}, s36, v{F}"); L.append(f"v_min_f32 v{F+1}, s36, v{F+1}")
        for (F,G) in P:
            L.append(f"v_exp_f32 v{G}, v{G}"); L.append(f"v_exp_f32 v{G+1}, v{G+1}")
        for (F,G) in P:
            L.append(f"v_exp_f32 v{F}, v{F}"); L.append(f"v_exp_f32 v{F+1}, v{F+1}")
        if len(P) < 2: L.append("s_nop 0")
        for k,(F,G) in enumerate(P):
            T = V['T'] + 2*k
            L.append(f"v_pk_fma_f32 v[{T}:{T+1}], v[{F}:{F+1}], v[{F}:{F+1}], s[34:35]")
        for k,(F,G) in enumerate(P):
            T = V['T'] + 2*k
            L.append(f"v_pk_fma_f32 v[{G}:{G+1}], v[{T}:{T+1}], v[{G}:{G+1}], v[{T}:{T+1}]")
        for (F,G) in P:
            L.append(f"v_rcp_f32 v{G}, v{G}"); L.append(f"v_rcp_f32 v{G+1}, v{G+1}")
        for (F,G) in P:
            L.append(f"v_pk_fma_f32 v[{F}:{F+1}], v[{F}:{F+1}], v[{F}:{F+1}], s[34:35] neg_lo:[1,0,0] neg_hi:[1,0,0]")
        for (F,G) in P:
            L.append(f"v_pk_mul_f32 v[{F}:{F+1}], v[{F}:{F+1}], v[{G}:{G+1}]")
        for k,(F,G) in enumerate(P):
            L.append(f"v_cvt_pk_bf16_f32 v{dst[k]}, v{F}, v{F+1}")
        return L
    wq = list(wo_reads)
    for p in range(8):
        zb = V['Z'] + 4*(p & 1)
        L = act([(acc(p), acc(8+p)), (acc(16+p), acc(24+p))], [zb, zb+1, zb+2, zb+3])
        for k, ins in enumerate(L):
            a(ins)
            if k % 5 == 4 and wq: a(wq.pop(0))
        a(f"ds_write_b128 {v('ZW')}, {rng('v', zb, 4)} offset:{p*1024}")
    L = act([(acc(32), acc(34)), (acc(33), acc(35))], [V['Z8'], V['Z8']+1, V['Z8']+2, V['Z8']+3])
    a("s_waitcnt lgkmcnt(0)")
    a("s_barrier")
    AZ = 164
    for kap in range(4):
        for pb in range(2):
            a(f"ds_read_b128 {rng('a', AZ + 8*kap + 4*pb, 4)}, {v('ZR')} offset:{kap*8192 + pb*1024}")
    for ins in wq: a(ins)
    for ins in L: a(ins)
    a("s_waitcnt lgkmcnt(0)")
    a("s_nop 1")
    stamp()
    def oacc(ups, pb): return ACC + 8*ups + 4*pb
    def store_pair(vp):
        L = []
        for pb in range(2):
            st = V['ST'] + 4*pb
            A_ = oacc(2*vp, pb); B_ = oacc(2*vp+1, pb)
            L += [f"v_cvt_pk_bf16_f32 v{st}, v{A_}, v{A_+1}", f"v_cvt_pk_bf16_f32 v{st+1}, v{A_+2}, v{A_+3}",
                  f"v_cvt_pk_bf16_f32 v{st+2}, v{B_}, v{B_+1}", f"v_cvt_pk_bf16_f32 v{st+3}, v{B_+2}, v{B_+3}",
                  "s_nop 1",
                  f"v_permlane16_swap_b32 v{st}, v{st+2}", f"v_permlane16_swap_b32 v{st+1}, v{st+3}",
                  f"buffer_store_dwordx4 {rng('v',st,4)}, {v('OUT')}, s[24:27], 0 offen offset:{pb*576 + 64*vp}{store_mod}"]
        return L
    pend = []
    for ups in range(9):
        k = 0
        for kap in range(5):
            for pb in range(2):
                D = rng('v', oacc(ups,pb), 4)
                C = "0" if kap == 0 else D
                if kap < 4:
                    a(f"v_mfma_f32_16x16x32_bf16 {D}, {rng('a',aO(ups,kap),4)}, {rng('a',AZ+8*kap+4*pb,4)}, {C}")
                else:
                    a(f"v_mfma_f32_16x16x16_bf16 {D}, {rng('a',aO(ups,4),2)}, {rng('v',V['Z8']+2*pb,2)}, {C}")
                k += 1
                if pend and (ups % 2 == 1 or k > 8 or ups == 8 and k > 8):
                    for _ in range(2):
                        if pend: a(pend.pop(0))
        if ups % 2 == 1:
            assert not pend
            pend = store_pair(ups // 2)
    for ins in pend: a(ins)
    a("s_nop 7")
    st = V['Z']
    A_ = oacc(8,0); B_ = oacc(8,1)
    a(f"""
    v_cvt_pk_bf16_f32 v{st}, v{A_}, v{A_+1}
    v_cvt_pk_bf16_f32 v{st+1}, v{A_+2}, v{A_+3}
    v_cvt_pk_bf16_f32 v{st+2}, v{B_}, v{B_+1}
    v_cvt_pk_bf16_f32 v{st+3}, v{B_+2}, v{B_+3}
    s_nop 1
    v_permlane16_swap_b32 v{st}, v{st+2}
    v_permlane16_swap_b32 v{st+1}, v{st+3}
    buffer_store_dwordx4 {rng('v',st,4)}, {v('OUT8')}, s[24:27], 0 offen offset:256{store_mod}
    """)
    if stamps:
        stamp()
        a("s_waitcnt vmcnt(0)")
        stamp()
        emit_stamps(a, stamps, stamp_n[0], v('lane'))
    a("L_end:")
    return wrap(a.text(), 250, 256, LDS_BYTES, vgpr=512, sgpr=102, accum=256)

if __name__ == "__main__":
    open("v1.s","w").write(gen())
    open("v1_st.s","w").write(gen(stamps=True))
    open("v1_dbg.s","w").write(gen(stamps="dbg"))
```

```python
import sys, struct
from asmlib import *

SLOT = 18432
XBASE = 6 * SLOT
XCH = 8960
XO = XBASE + 4 * XCH
XDUMMY = XO + 4864
WOT = XDUMMY + 512
LDS_BYTES = WOT + 4608
LOG2E = 1.4426950408889634
def f2u(x): return struct.unpack("<I", struct.pack("<f", x))[0]
def rng(p, b, n): return f"{p}[{b}:{b+n-1}]"

def gen(stamps=False, warm="v", store_mod="", xmod=" nt", wmod="", w0mod=None, warmmod="", order="axhW", split0=False, prio=None):
    if w0mod is None: w0mod = wmod
    a = Asm()
    ACC = 8
    def acc(u): return ACC + 4*u
    V = {}
    nxt = [80]
    def valloc(name, n=1, align=1):
        while nxt[0] % align: nxt[0] += 1
        V[name] = nxt[0]; nxt[0] += n
        assert nxt[0] <= 128, name
        return V[name]
    for nm in ["lane","kqh","vW","vL"]: valloc(nm)
    valloc("WB", 8)
    valloc("XF"); valloc("XH", 5); valloc("XK"); valloc("XKH"); valloc("XC")
    for nm in ["OB0","OB8","OT0","OT8","ZW","ZR0","ZR1","Z8W","Z8R","OUT0","OUT1","OUT8"]: valloc(nm)
    valloc("T", 8, 2)
    valloc("Z", 4, 2)
    v = lambda nm, i=0: f"v{V[nm]+i}"
    def aW(buf, T): return 16*buf + 4*T
    POOL0 = 32
    def aH(buf): return 96 + 4*buf
    def aK(p): return 104 + 2*p
    stamp_n = [0]
    def stamp():
        if stamps:
            k = stamp_n[0]; stamp_n[0] += 1
            a(f"s_memtime s[{44+2*k}:{45+2*k}]")
    vq = []
    def vwait(tags):
        last = max(i for i,t in enumerate(vq) if t in tags)
        return len(vq) - 1 - last
    lq = []
    def opregs(tok):
        tok = tok.strip()
        if tok[0] not in 'av' or '[' not in tok: return set()
        r = tok[2:-1].split(':')
        return {(tok[0], k) for k in range(int(r[0]), int(r[1])+1)}
    def lneed(regs):
        last = -1
        for i, t in enumerate(lq):
            if regs is None or (t & regs): last = i
        if last < 0: return None
        n = min(len(lq) - 1 - last, 14)
        del lq[:len(lq)-n]
        return n
    def E(ins):
        if isinstance(ins, tuple):
            vq.append(ins[0]); a(ins[1])
        elif ins.startswith('ds_') and len(lq) >= 15:
            a("s_waitcnt lgkmcnt(8)"); del lq[:len(lq)-8]; E(ins)
        elif ins.startswith('ds_read'):
            lq.append(opregs(ins.split(None,1)[1].split(',')[0])); a(ins)
        elif ins.startswith('ds_write'):
            lq.append(set()); a(ins)
        elif ins.startswith('v_mfma'):
            ops = ins.split(None, 1)[1].split(',')
            n = lneed(opregs(ops[1]) | opregs(ops[2]))
            if n is not None: a(f"s_waitcnt lgkmcnt({n})")
            a(ins)
        else: a(ins)
    def emit(grp):
        for ins in grp: E(ins)
    if stamps: a("s_memrealtime s[40:41]")
    stamp()
    a(f"""
    s_load_dwordx8 s[4:11], s[0:1], 0
    s_cmp_ge_u32 s2, 250
    s_cbranch_scc1 L_end
    v_lshrrev_b32 v1, 6, v0
    v_and_b32 {v('lane')}, 63, v0
    s_cmp_ge_u32 s2, 125
    v_readfirstlane_b32 s3, v1
    s_cselect_b32 s31, 125, 0
    s_cselect_b32 s37, 4608000, 0
    s_sub_u32 s31, s2, s31
    s_mul_i32 s31, s31, {128*288}
    s_sub_u32 s38, s31, {8*288}
    v_lshrrev_b32 v2, 1, {v('lane')}
    v_mul_u32_u24 v2, 288, v2
    v_and_b32 v3, 1, v0
    v_lshl_add_u32 v2, v3, 4, v2
    s_mul_i32 s28, s3, 4608
    s_add_u32 s30, s28, s38
    v_add_u32 v4, s30, v2
    v_lshrrev_b32 v5, 2, {v('lane')}
    v_mul_u32_u24 v5, 288, v5
    v_and_b32 v3, 3, v0
    v_lshl_add_u32 v5, v3, 4, v5
    v_add_u32 {v('XC')}, s30, v5
    ; halo rows 128..135: waves 0..3 chunk w, wave 4 odd chunk, others nothing
    s_cmp_ge_u32 s3, 4
    s_cselect_b64 vcc, -1, 0
    s_lshl_b32 s30, s3, 6
    s_add_u32 s30, s30, s38
    s_add_u32 s30, s30, {128*288}
    v_cndmask_b32 v5, v5, v2, vcc
    s_cmp_ge_u32 s3, 5
    s_cselect_b32 s30, 0x7ff00000, s30
    v_add_u32 v5, s30, v5
    s_mul_i32 s42, s3, {XCH}
    s_add_u32 s42, s42, {XBASE + 8*1056}
    s_cselect_b32 s42, s42, s42
    s_cmp_eq_u32 s3, 4
    s_cselect_b32 s42, {XO + 8*544}, s42
    s_cmp_ge_u32 s3, 5
    s_cselect_b32 s42, {XDUMMY}, s42
    s_and_b32 s30, s3, 1
    s_lshl_b32 s30, s30, 1
    v_xor_b32 v2, s30, {v('lane')}
    v_lshlrev_b32 {v('vW')}, 4, v2
    s_lshr_b32 s29, s3, 1
    s_mul_i32 s29, s29, {82944 - 9216}
    s_add_u32 s29, s29, s28              ; s29 = (w>>1)*82944 + (w&1)*4608
    s_and_b32 s70, s2, -8
    s_add_u32 s70, s70, s3               ; s70 = (wg>>3)*8 + w
    s_mul_i32 s30, s70, {14*128}
    v_lshl_add_u32 v6, {v('lane')}, 7, s30
    s_mul_i32 s39, s3, 544
    s_add_u32 s39, s39, {XO}
    s_mul_i32 s43, s3, 1056
    s_add_u32 s43, s43, {XBASE}
    s_mov_b32 s14, 4608000
    s_mov_b32 s15, 0x20000
    s_mov_b32 s18, 414720
    s_mov_b32 s19, 0x20000
    s_waitcnt lgkmcnt(0)
    s_add_u32 s12, s4, s37
    s_addc_u32 s13, s5, 0
    s_mov_b32 s16, s6
    s_mov_b32 s17, s7
    """)
    def woff(s):
        c, i = divmod(s - 2, 5); return i*82944 + c*SLOT
    def dma_pair(k):
        pos = (k % 3) * 2 * SLOT
        srd, vo, mod = "s[16:19]", v('vW'), (w0mod if k == 0 else wmod)
        if k == 0: so = f"s_add_u32 s30, s29, {128*576}"
        elif k <= 10:
            s = 2*k
            d = woff(s+1) - woff(s)
            so = f"s_add_u32 s30, {'s66' if d == 82944 else 's67'}, {woff(s)}"
            assert d in (82944, SLOT - 4*82944)
        elif k == 11: so = f"s_add_u32 s30, s28, {4*82944 + 128*576}"
        else:
            srd, vo = "s[20:23]", v('vL')
            so = f"s_mov_b32 s30, s28"
        tag = f"w{k}"
        L = [[f"s_add_u32 m0, s28, {pos}", so],
             ["s_mov_b32 exec_hi, 0", (tag, f"buffer_load_dwordx4 {vo}, {srd}, s30 offen{mod} lds"), "s_mov_b32 exec_hi, -1"]]
        for j in range(4):
            L.append([(tag, f"buffer_load_dwordx4 {vo}, {srd}, s30 offen offset:{512+1024*j}{mod} lds")])
        return L
    def dma_xc(c):
        return [[f"s_add_u32 m0, s43, {c*XCH}", f"s_movk_i32 s30, {64*c}", (f"x{c}", f"buffer_load_dwordx4 {v('XC')}, s[12:15], s30 offen{xmod} lds")]]
    for o in order:
        if o == "a" and warm == "v":
            emit(["s_mov_b64 exec, 0x3fff", ("warm", f"buffer_load_dword v6, v6, s[16:19], 0 offen{warmmod}"), "s_mov_b64 exec, -1"])
        elif o == "a" and warm == "s":
            a(f"s_mul_i32 s30, s70, {14*128}")
            a(f"s_min_u32 s30, s30, {414720 - 14*128}")
            a("s_add_u32 s72, s6, s30"); a("s_addc_u32 s73, s7, 0")
            for j in range(14): a(f"s_load_dword s71, s[72:73], {128*j}")
        elif o == "x":
            emit(["s_mov_b32 m0, s39", "s_movk_i32 s30, 256", "s_mov_b32 exec_hi, 0", ("xo", f"buffer_load_dwordx4 v4, s[12:15], s30 offen{xmod} lds"), "s_mov_b32 exec_hi, -1"])
        elif o == "h":
            emit(["s_mov_b32 m0, s42", "s_mov_b32 exec_hi, 0", ("xb", f"buffer_load_dwordx4 v5, s[12:15], 0 offen{xmod} lds"), "s_mov_b32 exec_hi, -1"])
        elif o == "W":
            for g in dma_pair(0): emit(g)
    for g in dma_xc(0): emit(g)
    a(f"""
    s_lshr_b32 s30, s3, 2
    s_mul_i32 s66, s30, {82944 - SLOT}
    s_add_u32 s66, s66, s28
    s_mul_i32 s67, s30, {-4*82944}
    s_add_u32 s67, s67, s28
    s_mov_b32 s20, s8
    s_mov_b32 s21, s9
    s_mov_b32 s22, 41472
    s_mov_b32 s23, 0x20000
    s_add_u32 s24, s10, s37
    s_addc_u32 s25, s11, 0
    s_mov_b32 s26, 4608000
    s_mov_b32 s27, 0x20000
    s_mov_b32 s32, {f2u(-LOG2E):#x}
    s_mov_b32 s33, {f2u(-LOG2E):#x}
    s_mov_b32 s34, 1.0
    s_mov_b32 s35, 1.0
    s_mov_b32 s36, {f2u(32.0):#x}
    v_lshlrev_b32 {v('vL')}, 4, {v('lane')}
    v_and_b32 v1, 15, {v('lane')}              ; n
    v_lshrrev_b32 v2, 4, {v('lane')}           ; kq
    v_lshrrev_b32 v3, 2, v1                    ; r
    v_and_b32 v7, 3, v1                        ; c
    v_and_b32 {v('Z',0)}, 1, v2                ; kq1
    v_lshrrev_b32 {v('kqh')}, 1, v2
    v_lshl_add_u32 {v('T',0)}, v2, 3, v3
    v_mul_u32_u24 {v('T',0)}, 576, {v('T',0)}
    v_lshl_add_u32 {v('T',0)}, v7, 3, {v('T',0)}      ; (8kq+r)*576 + c*8
    v_lshlrev_b32 {v('T',1)}, 5, {v('Z',0)}           ; 32*kq1
    s_lshl_b32 s30, s3, 5
    v_xor_b32 {v('T',2)}, s30, {v('T',1)}
    v_add_u32 {v('WB',0)}, {v('T',0)}, {v('T',2)}
    s_add_u32 s30, s30, 288
    v_xor_b32 {v('T',2)}, s30, {v('T',1)}
    v_add_u32 {v('WB',1)}, {v('T',0)}, {v('T',2)}
    v_xor_b32 {v('T',2)}, 256, {v('T',1)}
    v_add_u32 {v('WB',2)}, {v('T',0)}, {v('T',2)}
    v_xor_b32 {v('T',2)}, 544, {v('T',1)}
    v_add_u32 {v('WB',3)}, {v('T',0)}, {v('T',2)}
    """)
    for T in range(4):
        a(f"v_add_u32 {v('WB',4+T)}, {3*SLOT}, {v('WB',T)}")
    a(f"""
    v_lshl_add_u32 {v('T',0)}, v2, 2, v3
    v_mul_u32_u24 {v('T',0)}, 288, {v('T',0)}
    v_lshl_add_u32 {v('OB8')}, v7, 3, {v('T',0)}
    s_and_b32 s30, s3, 1
    s_lshl_b32 s30, s30, 7
    v_add_u32 {v('OB0')}, s30, {v('OB8')}
    v_add_u32 {v('OT0')}, {WOT}, {v('OB0')}
    v_add_u32 {v('OT8')}, {WOT}, {v('OB8')}
    v_add_u32 v1, 4, v1
    v_and_b32 v3, 7, v1                        ; alpha
    v_bfe_u32 v7, v1, 3, 1                     ; pi
    v_mul_u32_u24 {v('T',0)}, 1056, v3
    v_lshl_add_u32 {v('T',0)}, v7, 6, {v('T',0)}
    v_lshl_add_u32 {v('T',0)}, v2, 4, {v('T',0)}
    v_add_u32 {v('XF')}, {XBASE}, {v('T',0)}
    """)
    for j in range(5):
        a(f"""
        s_add_u32 s30, s3, {j}
        s_lshr_b32 s68, s30, 3
        s_lshl_b32 s30, s30, 7
        s_lshl_b32 s68, s68, 5
        s_add_u32 s30, s30, s68
        v_add_u32 {v('XH',j)}, s30, {v('XF')}
        """)
    a(f"""
    v_mul_u32_u24 {v('T',3)}, 544, v3
    v_lshl_add_u32 {v('T',3)}, v7, 5, {v('T',3)}
    v_lshl_add_u32 {v('T',3)}, {v('Z',0)}, 4, {v('T',3)}
    v_add_u32 {v('T',3)}, {XO}, {v('T',3)}
    v_lshl_add_u32 {v('XK')}, {v('kqh')}, 3, {v('T',3)}
    s_lshl_b32 s30, s3, 6
    v_add_u32 {v('XKH')}, s30, {v('XK')}
    v_lshlrev_b32 {v('T',0)}, 6, {v('kqh')}
    v_sub_u32 {v('T',4)}, {v('T',3)}, {v('T',0)}       ; T4 = XP
    v_lshlrev_b32 {v('T',0)}, 5, {v('kqh')}
    v_sub_u32 {v('T',5)}, {v('T',4)}, {v('T',0)}       ; T5 = XP8
    """)
    for k, i in enumerate((0, 2)):
        a(f"""
        s_add_u32 s30, s3, {4-i}
        v_sub_u32 {v('T',0)}, s30, {v('kqh')}
        v_lshrrev_b32 {v('T',1)}, 3, {v('T',0)}
        v_lshl_add_u32 {v('T',0)}, {v('T',0)}, 6, {v('T',3)}
        v_lshl_add_u32 {v('T',6+k)}, {v('T',1)}, 5, {v('T',0)}
        """)
    a(f"""
    v_lshl_add_u32 v3, v3, 4, v7
    v_mul_u32_u24 v3, 288, v3
    s_mul_i32 s30, s3, 576
    s_add_u32 s30, s30, s31
    v_add_u32 v1, s30, v3
    v_lshl_add_u32 {v('OUT8')}, v2, 3, v1
    v_lshlrev_b32 v7, 4, {v('kqh')}
    v_lshl_add_u32 v7, {v('Z',0)}, 5, v7
    s_and_b32 s68, s3, 1
    s_lshl_b32 s68, s68, 7
    v_add_u32 v7, s68, v7
    v_add_u32 {v('OUT0')}, v1, v7
    s_xor_b32 s30, s3, 1
    s_mul_i32 s30, s30, 576
    s_add_u32 s30, s30, s31
    v_add3_u32 {v('OUT1')}, v3, v7, s30
    ; z exchange
    s_lshr_b32 s30, s3, 1
    s_lshl_b32 s30, s30, 13
    s_and_b32 s68, s3, 1
    s_lshl_b32 s68, s68, 3
    s_add_u32 s30, s30, s68
    s_add_u32 s30, s30, {XBASE}
    v_add_u32 {v('ZW')}, s30, {v('vL')}
    s_lshl_b32 s30, s3, 10
    s_add_u32 s30, s30, {XBASE}
    v_add_u32 {v('ZR0')}, s30, {v('vL')}
    v_xor_b32 {v('ZR1')}, 1024, {v('ZR0')}
    s_lshl_b32 s30, s3, 9
    s_add_u32 s30, s30, {XBASE + 32768}
    v_lshl_add_u32 {v('Z8W')}, {v('lane')}, 3, s30
    v_xor_b32 {v('Z8R')}, 512, {v('Z8W')}
    """)
    assert XBASE % 2048 == 0
    if prio is not None:
        a(f"""
        s_cmp_ge_u32 s3, 4
        s_cbranch_scc{0 if prio == 'young' else 1} L_noprio
        s_setprio 1
        L_noprio:
        """)
    for g in dma_pair(1): emit(g)
    def wreads(s):
        rho = s % 6; half = rho // 3; buf = s & 1
        L = []
        for T in range(4):
            if s < 22:
                for e2 in range(2):
                    L.append(f"ds_read_b64_tr_b16 {rng('a', aW(buf,T)+2*e2, 2)}, {v('WB',4*half+T)} offset:{(rho%3)*SLOT + e2*2304}")
            else:
                L.append(f"ds_read_b64_tr_b16 {rng('a', aW(buf,T), 2)}, {v('WB',T)} offset:{(rho%3)*SLOT}")
        return L
    def step_info(s):
        if s < 2: return ("o", 2*s)
        if s < 22: return divmod(s-2, 5)
        return ("k", 4)
    def need(s):
        c, i = step_info(s)
        return [(c, p - i + 4) for p in range(8)]
    def xread(key, reg):
        c, q = key
        if c == "o": return f"ds_read_b128 {rng('a',reg,4)}, {v('T',5) if q==8 else v('T',4)} offset:{q*64 + (32 if q>=8 else 0)}"
        return f"ds_read_b128 {rng('a',reg,4)}, {v('XF')} offset:{c*XCH + q*128 + (32 if q>=8 else 0)}"
    def hread(s):
        c, i = step_info(s); reg = aH(s & 1)
        if c == "o": return f"ds_read_b128 {rng('a',reg,4)}, {v('T',6+i//2)}"
        return f"ds_read_b128 {rng('a',reg,4)}, {v('XH',4-i)} offset:{c*XCH}"
    kreads = [f"ds_read_b64 {rng('a',aK(p),2)}, {v('XK')} offset:{p*64}" for p in range(8)] + [f"ds_read_b64 {rng('a',aK(8),2)}, {v('XKH')}"]
    lastuse = {}; firstuse = {}
    for s in range(22):
        for k in need(s):
            lastuse[k] = s; firstuse.setdefault(k, s)
    free = list(range(16)); loc = {}
    avail = {"o": -1, 0: 1, 1: 3, 2: 3, 3: 3}
    xorder = sorted(firstuse, key=lambda k: (firstuse[k], k[1]))
    def xprefetch(s, maxn):
        L = []
        for k in xorder:
            if k in loc: continue
            must = firstuse[k] == s + 1
            if not must and (len(L) >= maxn or avail[k[0]] > s or not free): break
            assert avail[k[0]] <= s, (k, s)
            loc[k] = free.pop(0)
            L.append(xread(k, POOL0 + 4*loc[k]))
        return L
    def release(s):
        for k, l in loc.items():
            if lastuse[k] == s: free.append(l)
    def mfmas(s):
        buf = s & 1
        L = []
        nd = need(s)
        for T in range(4):
            for p in range(8 if T < 2 else 1):
                u = 8*T + p if T < 2 else 14 + T
                D = rng('v', acc(u), 4)
                C = "0" if s == 0 else D
                if s < 22:
                    B = POOL0 + 4*loc[nd[p]] if T < 2 else aH(buf)
                    L.append(f"v_mfma_f32_16x16x32_bf16 {D}, {rng('a',aW(buf,T),4)}, {rng('a',B,4)}, {C}")
                else:
                    B = aK(p if T < 2 else 8)
                    L.append(f"v_mfma_f32_16x16x16_bf16 {D}, {rng('a',aW(buf,T),2)}, {rng('a',B,2)}, {C}")
        return L
    a(f"s_waitcnt vmcnt({vwait(['xo','xb','w0'])}) lgkmcnt(0)")
    a("s_barrier")
    stamp()
    w0 = wreads(0)
    emit(w0[:2] + xprefetch(-1, 0) + w0[2:] + [hread(0)])
    WREGS = {('a', k) for k in range(32)}
    for s in range(23):
        groups = []
        if s % 2 == 1:
            k = (s + 1) // 2
            tags = [f"w{k}"]
            if s == 1: tags.append("x0")
            if s == 3: tags += ["x1","x2","x3"]
            if s == 21: tags += ["w12", "wot"]
            n = lneed(None if s == 21 else WREGS)
            a(f"s_waitcnt vmcnt({vwait(tags)})" + (f" lgkmcnt({n})" if n is not None else ""))
            a("s_barrier")
            if k + 2 <= 12: groups += dma_pair(k + 2)
        if s == 0:
            groups += dma_pair(2) + dma_xc(1) + dma_xc(2) + dma_xc(3)
        if s == 2:
            groups += [[f"s_lshl_b32 s30, s70, 8", f"v_lshl_add_u32 v6, {v('lane')}, 7, s30"],
                       ["s_mov_b64 exec, 3", ("warm2", f"buffer_load_dword v6, v6, s[20:23], 0 offen"), "s_mov_b64 exec, -1"],
                       [f"s_mul_i32 s30, s3, 576", f"s_add_u32 m0, s30, {WOT}", f"s_add_u32 s30, s30, {128*288}"],
                       ["s_mov_b32 exec_hi, 15", ("wot", f"buffer_load_dwordx4 {v('vL')}, s[20:23], s30 offen lds"), "s_mov_b32 exec_hi, -1"]]
        rd = []
        if s == 21:
            rd.append(f"v_mul_u32_u24 {v('T',0)}, 6912, {v('kqh')}")
            for T in range(4): rd.append(f"v_sub_u32 {v('WB',T)}, {v('WB',4+T)}, {v('T',0)}")
        if s < 22: rd += wreads(s + 1)
        if s < 21: rd += xprefetch(s, 3) + [hread(s + 1)]
        if 18 <= s <= 20: rd += kreads[3*(s-18): 3*(s-18)+3]
        fill = [[x] for x in rd] + list(groups)
        M = mfmas(s)
        nM = len(M)
        if len(fill) <= nM: pos = list(range(len(fill)))
        else: pos = [(j * nM) // len(fill) for j in range(len(fill))]
        for k, mm in enumerate(M):
            E(mm)
            for j, f in enumerate(fill):
                if pos[j] == k: emit(f)
        release(s)
    stamp()
    def aO(u, kap): return 18*u + 4*kap
    wo_reads = []
    for u in range(5):
        toff = u*32 if u < 4 else 256
        wo_reads.append(f"ds_read_b64_tr_b16 {rng('a', aO(u,4), 2)}, {v('OT0') if u < 4 else v('OT8')} offset:{toff}")
        for kap in range(4):
            for e2 in range(2):
                wo_reads.append(f"ds_read_b64_tr_b16 {rng('a', aO(u,kap)+2*e2, 2)}, {v('OB0') if u < 4 else v('OB8')} offset:{kap*9216 + e2*4608 + toff}")
    def act(pairs, dst):
        L = []
        P = [(F+2*h, G+2*h) for (F,G) in pairs for h in range(2)]
        for (F,G) in P: L.append(f"v_pk_mul_f32 v[{F}:{F+1}], v[{F}:{F+1}], s[32:33]")
        for (F,G) in P: L.append(f"v_pk_mul_f32 v[{G}:{G+1}], v[{G}:{G+1}], s[32:33]")
        for (F,G) in P: L += [f"v_min_f32 v{F}, s36, v{F}", f"v_min_f32 v{F+1}, s36, v{F+1}"]
        for (F,G) in P: L += [f"v_exp_f32 v{G}, v{G}", f"v_exp_f32 v{G+1}, v{G+1}"]
        for (F,G) in P: L += [f"v_exp_f32 v{F}, v{F}", f"v_exp_f32 v{F+1}, v{F+1}"]
        for k,(F,G) in enumerate(P):
            T = V['T'] + 2*k
            L.append(f"v_pk_fma_f32 v[{T}:{T+1}], v[{F}:{F+1}], v[{F}:{F+1}], s[34:35]")
        for k,(F,G) in enumerate(P):
            T = V['T'] + 2*k
            L.append(f"v_pk_fma_f32 v[{G}:{G+1}], v[{T}:{T+1}], v[{G}:{G+1}], v[{T}:{T+1}]")
        for (F,G) in P: L += [f"v_rcp_f32 v{G}, v{G}", f"v_rcp_f32 v{G+1}, v{G+1}"]
        for (F,G) in P: L.append(f"v_pk_fma_f32 v[{F}:{F+1}], v[{F}:{F+1}], v[{F}:{F+1}], s[34:35] neg_lo:[1,0,0] neg_hi:[1,0,0]")
        for (F,G) in P: L.append(f"v_pk_mul_f32 v[{F}:{F+1}], v[{F}:{F+1}], v[{G}:{G+1}]")
        for k,(F,G) in enumerate(P): L.append(f"v_cvt_pk_bf16_f32 v{dst[k]}, v{F}, v{F+1}")
        return L
    wq = list(wo_reads)
    for pp in range(4):
        p0, p1 = 2*pp, 2*pp+1
        L = act([(acc(p0), acc(8+p0)), (acc(p1), acc(8+p1))], [acc(8+p0), acc(8+p0)+1, acc(8+p1), acc(8+p1)+1])
        for k, ins in enumerate(L):
            a(ins)
            if k % 5 == 4 and wq: E(wq.pop(0))
        E(f"ds_write_b64 {v('ZW')}, {rng('v', acc(8+p0), 2)} offset:{p0*1024}")
        E(f"ds_write_b64 {v('ZW')}, {rng('v', acc(8+p1), 2)} offset:{p1*1024}")
    for ins in act([(acc(16), acc(17))], [V['Z'], V['Z']+1]): a(ins)
    E(f"ds_write_b64 {v('Z8W')}, {rng('v', V['Z'], 2)}")
    assert not wq
    lneed(None)
    a("s_waitcnt lgkmcnt(0)")
    a("s_barrier")
    AZ = 92
    E(f"ds_read_b64 {rng('v', V['Z']+2, 2)}, {v('Z8R')}")
    for kap in range(4):
        for pb in range(2):
            E(f"ds_read_b128 {rng('a', AZ + 8*kap + 4*pb, 4)}, {v('ZR%d'%pb)} offset:{kap*8192}")
    stamp()
    def oacc(u, pb): return ACC + 8*u + 4*pb
    def store_pair(vp):
        L = []
        for pb in range(2):
            st = V['T'] + 4*pb
            A_ = oacc(2*vp, pb); B_ = oacc(2*vp+1, pb)
            L += [f"v_cvt_pk_bf16_f32 v{st}, v{A_}, v{A_+1}", f"v_cvt_pk_bf16_f32 v{st+1}, v{A_+2}, v{A_+3}",
                  f"v_cvt_pk_bf16_f32 v{st+2}, v{B_}, v{B_+1}", f"v_cvt_pk_bf16_f32 v{st+3}, v{B_+2}, v{B_+3}",
                  "s_nop 1",
                  f"v_permlane16_swap_b32 v{st}, v{st+2}", f"v_permlane16_swap_b32 v{st+1}, v{st+3}",
                  f"buffer_store_dwordx4 {rng('v',st,4)}, {v('OUT%d'%pb)}, s[24:27], 0 offen offset:{64*vp}{store_mod}"]
        return L
    for pb in range(2):
        for u in ([4,0,1,2,3] if pb == 0 else [0,1,2,3]):
            E(f"v_mfma_f32_16x16x16_bf16 {rng('v',oacc(u,pb),4)}, {rng('a',aO(u,4),2)}, {rng('v',V['Z']+2*pb,2)}, 0")
    pend = []
    for u in [4, 0, 1, 2, 3]:
        k = 0
        for kap in range(4):
            for pb in range(2 if u < 4 else 1):
                D = rng('v', oacc(u,pb), 4)
                E(f"v_mfma_f32_16x16x32_bf16 {D}, {rng('a',aO(u,kap),4)}, {rng('a',AZ+8*kap+4*pb,4)}, {D}")
                k += 1
                if pend and u in (1, 3):
                    for _ in range(2):
                        if pend: a(pend.pop(0))
        if u == 4:
            A_ = oacc(4, 0)
            pend = [f"v_cvt_pk_bf16_f32 v{A_}, v{A_}, v{A_+1}", f"v_cvt_pk_bf16_f32 v{A_+1}, v{A_+2}, v{A_+3}",
                    f"buffer_store_dwordx2 {rng('v',A_,2)}, {v('OUT8')}, s[24:27], 0 offen offset:256{store_mod}"]
        if u == 1:
            assert not pend
            pend = store_pair(0)
    assert not pend
    a("s_nop 7")
    for ins in store_pair(1): a(ins)
    if stamps:
        stamp()
        a("s_waitcnt vmcnt(0)")
        stamp()
        a("s_cmp_ge_u32 s3, 4")
        a("s_cselect_b32 s69, 250, 0")
        a("s_and_b32 s3, s3, 3")
        a("s_add_u32 s2, s2, s69")
        emit_stamps(a, stamps, stamp_n[0], v('lane'))
    a("L_end:")
    return wrap(a.text(), 250, 512, LDS_BYTES, vgpr=256, sgpr=102, accum=128)

if __name__ == "__main__":
    open("v3.s","w").write(gen())
    open("v3_st.s","w").write(gen(stamps=True))
    open("v3a_st.s","w").write(gen(stamps=True, warmmod=" nt"))
    open("v3b_st.s","w").write(gen(stamps=True, warmmod=" nt", w0mod=" nt"))
    open("v3c_st.s","w").write(gen(stamps=True, warmmod=" nt", wmod=" nt"))
    open("v3d_st.s","w").write(gen(stamps=True, warm="s"))
    open("v3e_st.s","w").write(gen(stamps=True, warm="s", w0mod=" nt", order="xhWa"))
    open("v3f_st.s","w").write(gen(stamps=True, warm="n"))
```

```python
KN = "standalone__autoregressive_conv_wavenet__speech_kernel"
class Asm:
    def __init__(self):
        self.lines = []
    def __call__(self, s):
        for l in s.split("\n"):
            l = l.strip()
            if l: self.lines.append("    " + l if not l.endswith(":") else l)
    def label(self, n): self.lines.append(n + ":")
    def text(self): return "\n".join(self.lines)

def wrap(body, grid, block, lds, vgpr=256, sgpr=102, accum=256, extra_kd=""):
    return f"""; @launch grid=({grid},1,1) block=({block},1,1) lds={lds}
.amdgcn_target "amdgcn-amd-amdhsa--gfx950"
.text
.globl {KN}
.p2align 8
.type {KN},@function
{KN}:
{body}
s_endpgm
.section .rodata,"a"
.p2align 6
.amdhsa_kernel {KN}
  .amdhsa_next_free_vgpr {vgpr}
  .amdhsa_next_free_sgpr {sgpr}
  .amdhsa_accum_offset {accum}
  .amdhsa_group_segment_fixed_size 0
  .amdhsa_kernarg_size 48
  .amdhsa_user_sgpr_count 2
  .amdhsa_user_sgpr_kernarg_segment_ptr 1
  .amdhsa_system_sgpr_workgroup_id_x 1
{extra_kd}.end_amdhsa_kernel
"""

def emit_stamps(a, mode, n, vlane):
    a("s_memrealtime s[42:43]")
    a(f"s_load_dwordx2 s[60:61], s[0:1], {32 if mode=='dbg' else 40}")
    a("s_waitcnt lgkmcnt(0)")
    a(f"s_mov_b32 s62, {256 if mode=='dbg' else 0x1000000}")
    a("s_mov_b32 s63, 0x20000")
    if mode == "dbg": a("s_not_b32 s40, s40")
    a("v_mov_b32 v4, s40")
    a("v_mov_b32 v5, s42")
    for k in range(1, n):
        a(f"s_sub_u32 s{44+2*k}, s{44+2*k}, s44")
        a(f"v_mov_b32 v{5+k}, s{44+2*k}")
    if mode == "dbg":
        a(f"""
        v_mov_b32 v1, 0
        v_cmp_eq_u32 vcc, 0, {vlane}
        s_and_saveexec_b64 s[64:65], vcc
        """)
        for k in range(n+1):
            a(f"buffer_atomic_umax v{4+k}, v1, s[60:63], 0 offen offset:{4*k}")
        a(f"""
        s_lshl_b32 s38, s2, 2
        s_add_u32 s38, s38, s3
        s_cmp_eq_u32 s38, 401
        s_cbranch_scc0 L_nost
        buffer_store_dwordx4 v[4:7], v1, s[60:63], 0 offen offset:32
        buffer_store_dwordx4 v[8:11], v1, s[60:63], 0 offen offset:48
        L_nost:
        s_waitcnt vmcnt(0)
        """)
    else:
        a(f"""
        s_lshl_b32 s38, s2, 2
        s_add_u32 s38, s38, s3
        s_lshl_b32 s38, s38, 5
        v_mov_b32 v1, s38
        v_cmp_eq_u32 vcc, 0, {vlane}
        s_and_saveexec_b64 s[64:65], vcc
        buffer_store_dwordx4 v[4:7], v1, s[60:63], 0 offen
        buffer_store_dwordx4 v[8:11], v1, s[60:63], 0 offen offset:16
        s_waitcnt vmcnt(0)
        """)

SB = 72
def emit_stamps2(a, n, vlane, vt=8):
    assert n <= 15
    a("s_memrealtime s[42:43]")
    a("s_load_dwordx2 s[60:61], s[0:1], 40")
    a("s_waitcnt lgkmcnt(0)")
    a("s_mov_b32 s62, 0x1000000")
    a("s_mov_b32 s63, 0x20000")
    a(f"v_mov_b32 v{vt}, s40")
    a(f"v_mov_b32 v{vt+1}, s42")
    for k in range(1, 15):
        if k < n:
            a(f"s_sub_u32 s{SB+2*k}, s{SB+2*k}, s{SB}")
            a(f"v_mov_b32 v{vt+1+k}, s{SB+2*k}")
        else: a(f"v_mov_b32 v{vt+1+k}, 0")
    a(f"""
    s_lshl_b32 s38, s2, 3
    s_add_u32 s38, s38, s3
    s_lshl_b32 s38, s38, 6
    v_mov_b32 v1, s38
    v_cmp_eq_u32 vcc, 0, {vlane}
    s_and_saveexec_b64 s[64:65], vcc
    """)
    for j in range(4):
        a(f"buffer_store_dwordx4 v[{vt+4*j}:{vt+4*j+3}], v1, s[60:63], 0 offen offset:{16*j}")
    a("s_waitcnt vmcnt(0)")
```

```python
import sys, struct
from asmlib import *

SLOT = 18432
XBASE = 6 * SLOT
XCH = 8960
XO = XBASE + 4 * XCH
XDUMMY = XO + 5 * 1024
WOT = XDUMMY + 512
LDS_BYTES = WOT + 4608
OIMG = 2 * SLOT
RUN = 1168
LOG2E = 1.4426950408889634
def f2u(x): return struct.unpack("<I", struct.pack("<f", x))[0]
def rng(p, b, n): return f"{p}[{b}:{b+n-1}]"
def lines(s): return [l.split(';')[0].strip() for l in s.split("\n") if l.split(';')[0].strip()]
def magic(d, n, sh=20):
    m = -(-(1 << sh) // d)
    assert all(((L*m) >> sh) == L//d for L in range(n)) and m < (1 << 24) and m*n < (1 << 32)
    return m, sh

SCHED1 = dict(
    B = {0: ["w2"], 1: ["w3"], 3: ["w4"], 5: ["x1","w5"], 7: ["x2","w6"], 9: ["x3","w7"], 11: ["wo","wot","w8"], 13: ["w9"], 15: ["w10"], 19: ["w12"]},
    A = {0: ["w2","wb"], 2: ["w3","xp"], 4: ["w4","x1","xh"], 6: ["w5"], 8: ["x2","w6"], 10: ["x3","w7"], 12: ["wot","w8"], 14: ["w9"], 16: ["w10"], 18: ["w11"], 19: ["w12"]},
    bars = {1: ["w1"], 3: ["w2"], 5: ["w3"], 7: ["w4","x1","xh"], 9: ["w5"], 11: ["w6","x2"], 13: ["w7","x3"], 15: ["w8"], 17: ["w9"], 19: ["w10"], 21: ["w11","w12","wot"]},
    avail = {"o": -1, 0: -1, 1: 7, 2: 11, 3: 13},
)
KS = 7
def step_info(s):
    if s < 2: return ("o", 2*s)
    if s == KS: return ("k", 4)
    return divmod(s - 2 - (s > KS), 5)

def gen(stamps=False, store_mod=" sc0 sc1", xmod=" nt", sched=SCHED1, aprio=True, eprio=False, bdelay=14):
    a = Asm()
    ACC = 8
    def acc(u): return ACC + 4*u
    V = {}
    nxt = [80]
    def valloc(name, n=1, align=1):
        while nxt[0] % align: nxt[0] += 1
        V[name] = nxt[0]; nxt[0] += n
        assert nxt[0] <= 128, name
        return V[name]
    for nm in ["lane","kqh","vW","vL"]: valloc(nm)
    valloc("WB", 8)
    valloc("XF"); valloc("XH", 5); valloc("XK"); valloc("XKH"); valloc("XC")
    for nm in ["OB0","OB8","OT0","OT8","ZW","ZR0","Z8W","OW0","OW8","OR","ORL","OUT","OUTL","Z8R","JUNK"]: valloc(nm)
    valloc("T", 8, 2)
    valloc("Z", 2, 2)
    v = lambda nm, i=0: f"v{V[nm]+i}"
    def aW(buf, T): return 16*buf + 4*T
    POOL0 = 32
    def aH(s): return 104 if s == 22 else 96 + 4*(s & 1)
    def aK(p): return 104 + 2*p
    stamp_n = [0]
    def stamp(name="x"):
        if stamps and (name == "x" or name in stamps):
            k = stamp_n[0]; stamp_n[0] += 1
            a(f"s_memtime s[{SB+2*k}:{SB+1+2*k}]")
    vq = {"A": [], "B": []}
    def vwait(g, tags):
        idx = [i for i,t in enumerate(vq[g]) if t in tags]
        return len(vq[g]) - 1 - max(idx) if idx else None
    lq = []
    def opregs(tok):
        tok = tok.strip()
        if tok[0] not in 'av' or '[' not in tok: return set()
        r = tok[2:-1].split(':')
        return {(tok[0], k) for k in range(int(r[0]), int(r[1])+1)}
    def lneed(regs):
        last = -1
        for i, t in enumerate(lq):
            if regs is None or (t & regs): last = i
        if last < 0: return None
        n = min(len(lq) - 1 - last, 14)
        del lq[:len(lq)-n]
        return n
    def E(ins):
        if ins.startswith('ds_') and len(lq) >= 15:
            a("s_waitcnt lgkmcnt(8)"); del lq[:len(lq)-8]; E(ins)
        elif ins.startswith('ds_read'):
            lq.append(opregs(ins.split(None,1)[1].split(',')[0])); a(ins)
        elif ins.startswith('ds_write'):
            lq.append({('w', 0)}); a(ins)
        elif ins.startswith('v_mfma'):
            ops = ins.split(None, 1)[1].split(',')
            n = lneed(opregs(ops[1]) | opregs(ops[2]))
            if n is not None: a(f"s_waitcnt lgkmcnt({n})")
            a(ins)
        else: a(ins)
    def emit(grp):
        for ins in grp: E(ins)
    def woff(s):
        c, i = step_info(s)
        return 4*82944 + 128*576 if c == "k" else i*82944 + c*SLOT
    def item(name):
        if name[0] == "w" and name[1:].isdigit():
            k = int(name[1:])
            pos = (k % 3) * 2 * SLOT
            srd, vo = "s[16:19]", v('vW')
            if k == 0: so = f"s_add_u32 s30, s29, {128*576}"
            elif k <= 10:
                s = 2*k
                d = woff(s+1) - woff(s)
                so = f"s_add_u32 s30, {({82944: 's66', SLOT - 4*82944: 's67', 128*576: 's49'})[d]}, {woff(s)}"
            elif k == 11: so = f"s_add_u32 s30, s28, {woff(22)}"
            else:
                srd, vo = "s[20:23]", v('vL'); so = "s_mov_b32 s30, s28"
            L = [f"s_add_u32 m0, s28, {pos}", so, "s_mov_b32 exec_hi, 0", f"buffer_load_dwordx4 {vo}, {srd}, s30 offen lds", "s_mov_b32 exec_hi, -1"]
            L += [f"buffer_load_dwordx4 {vo}, {srd}, s30 offen offset:{512+1024*j} lds" for j in range(4)]
            return L
        if name in ("x0","x1","x2","x3"):
            c = int(name[1])
            return [f"s_add_u32 m0, s43, {c*XCH}", f"s_movk_i32 s30, {64*c}", f"buffer_load_dwordx4 {v('XC')}, s[12:15], s30 offen{xmod} lds"]
        if name == "xh":
            return lines(f"""
            s_mul_i32 s48, s3, {XCH}
            s_add_u32 s48, s48, {XBASE + 8*1056}
            s_mul_i32 s30, s3, {64 - 4608}
            s_add_u32 s30, s30, {8*4608}
            s_cmp_lg_u32 s3, 0
            s_cselect_b32 m0, s48, {XDUMMY}
            s_cselect_b32 s30, s30, 0x7ff00000
            v_add_u32 v7, s30, {v('XC')}
            s_mov_b32 exec_hi, 0
            buffer_load_dwordx4 v7, s[12:15], 0 offen{xmod} lds
            s_mov_b32 exec_hi, -1""")
        if name == "xp":
            return lines(f"""
            v_lshrrev_b32 v6, 2, {v('lane')}
            v_mul_u32_u24 v6, 1152, v6
            v_and_b32 v7, 3, {v('lane')}
            v_min_u32 v7, 2, v7
            v_lshl_add_u32 v6, v7, 8, v6
            s_mul_i32 s30, s3, {9*1152}
            s_add_u32 s30, s30, s38
            v_add_u32 v6, s30, v6
            s_mov_b32 exec_hi, 15
            buffer_load_dword {v('JUNK')}, v6, s[12:15], 0 offen offset:128{xmod}
            s_mov_b32 exec_hi, -1""")
        if name == "wb":
            return lines(f"""
            s_lshl_b32 s30, s70, 2
            s_add_u32 s30, s30, s3
            s_mul_i32 s30, s30, {27*128}
            v_lshl_add_u32 v6, {v('lane')}, 7, s30
            s_mov_b64 exec, {(1<<27)-1}
            buffer_load_dword {v('JUNK')}, v6, s[16:19], 0 offen
            s_mov_b64 exec, -1""")
        if name == "wo":
            return lines(f"""
            s_lshl_b32 s30, s70, 2
            s_add_u32 s30, s30, s3
            s_mul_i32 s30, s30, {3*128}
            s_sub_u32 s30, s30, {4*3*128}
            v_lshl_add_u32 v6, {v('lane')}, 7, s30
            s_mov_b64 exec, 7
            buffer_load_dword {v('JUNK')}, v6, s[20:23], 0 offen
            s_mov_b64 exec, -1""")
        if name == "wot":
            return lines(f"""
            s_mul_i32 s30, s3, 576
            s_add_u32 m0, s30, {WOT}
            s_add_u32 s30, s30, {128*288}
            s_mov_b32 exec_hi, 15
            buffer_load_dwordx4 {v('vL')}, s[20:23], s30 offen lds
            s_mov_b32 exec_hi, -1""")
        raise ValueError(name)
    def issue(groups, names):
        for nm in names:
            for ins in item(nm):
                a(ins)
                if ins.startswith("buffer_load"):
                    for g in groups: vq[g].append(nm)
    if stamps: a("s_memrealtime s[40:41]")
    stamp()
    m216, sh216 = magic(216, 32*38+64)
    m34, sh34 = magic(34, 320, 16)
    a(f"""
    s_load_dwordx8 s[4:11], s[0:1], 0
    s_cmp_ge_u32 s2, 250
    s_cbranch_scc1 L_end
    v_lshrrev_b32 v1, 6, v0
    v_and_b32 {v('lane')}, 63, v0
    s_cmp_ge_u32 s2, 125
    v_readfirstlane_b32 s3, v1
    s_cselect_b32 s31, 125, 0
    s_cselect_b32 s37, 4608000, 0
    s_sub_u32 s31, s2, s31
    s_mul_i32 s31, s31, {128*288}
    s_sub_u32 s38, s31, {8*288}
    s_mul_i32 s28, s3, 4608
    s_and_b32 s44, s3, 3                 ; odd image piece: waves 4..7 -> 0..3, wave 2 -> 4
    s_cmp_eq_u32 s3, 2
    s_cselect_b32 s44, 4, s44
    s_lshl_b32 s30, s44, 6
    v_add_u32 v2, s30, {v('lane')}
    v_mul_u32_u24 v3, {m34}, v2
    v_lshrrev_b32 v3, {sh34}, v3
    v_lshrrev_b32 v2, 1, v2
    v_sub_u32 v2, v2, v3
    v_mul_u32_u24 v2, 288, v2
    v_and_b32 v3, 1, v0
    v_lshl_add_u32 v2, v3, 4, v2
    v_add_u32 v7, s38, v2                ; v7 = odd voffset (soffset 256)
    s_lshl_b32 s39, s44, 10
    s_add_u32 s39, s39, {XO}
    v_lshrrev_b32 v5, 2, {v('lane')}
    v_mul_u32_u24 v5, 288, v5
    v_and_b32 v3, 3, v0
    v_lshl_add_u32 v5, v3, 4, v5
    s_add_u32 s30, s28, s38
    v_add_u32 {v('XC')}, s30, v5
    s_mul_i32 s43, s3, 1056
    s_add_u32 s43, s43, {XBASE}
    s_lshr_b32 s70, s2, 3
    s_mul_i32 s30, s70, 38
    v_add_u32 v6, s30, {v('lane')}
    v_mul_u32_u24 v2, {m216}, v6
    v_lshrrev_b32 v2, {sh216}, v2
    v_mul_u32_u24 v2, 55296, v2
    v_lshl_add_u32 v6, v6, 7, v2
    v_subrev_u32 v6, 9216, v6            ; first-needed W lines: [i*82944-9216, i*82944+18432), 38 lines per workgroup
    s_mov_b32 s14, 4608000
    s_mov_b32 s15, 0x20000
    s_mov_b32 s18, 414720
    s_mov_b32 s19, 0x20000
    s_movk_i32 s30, 256
    s_mov_b32 m0, s39
    s_waitcnt lgkmcnt(0)
    s_add_u32 s12, s4, s37
    s_addc_u32 s13, s5, 0
    s_mov_b32 s16, s6
    s_mov_b32 s17, s7
    s_cmp_ge_u32 s3, 4
    s_cbranch_scc1 L_odd
    s_cmp_eq_u32 s3, 1
    s_cbranch_scc1 L_fdone
    s_cmp_eq_u32 s3, 3
    s_cbranch_scc1 L_halo0
    s_mov_b32 exec_hi, 0
    s_cmp_eq_u32 s3, 2
    s_cbranch_scc1 L_odd
    s_mov_b32 exec_hi, 63
    buffer_load_dword {v('JUNK')}, v6, s[16:19], 0 offen
    s_branch L_fdone
    L_halo0:
    s_mov_b32 m0, {XBASE + 8*1056}
    s_movk_i32 s30, {5*4608}
    s_mov_b32 exec_hi, 0
    buffer_load_dwordx4 {v('XC')}, s[12:15], s30 offen{xmod} lds
    s_branch L_fdone
    L_odd:
    buffer_load_dwordx4 v7, s[12:15], s30 offen{xmod} lds
    L_fdone:
    s_mov_b64 exec, -1
    """)
    issue("AB", ["x0"])
    stamp("i1")
    a(f"""
    s_and_b32 s45, s3, 1
    s_lshl_b32 s45, s45, 1
    v_xor_b32 v2, s45, {v('lane')}
    v_lshlrev_b32 {v('vW')}, 4, v2
    s_lshr_b32 s29, s3, 1
    s_mul_i32 s29, s29, {82944 - 9216}
    s_add_u32 s29, s29, s28              ; s29 = (w>>1)*82944 + (w&1)*4608
    v_and_b32 v1, 15, {v('lane')}              ; n
    v_lshrrev_b32 v2, 4, {v('lane')}           ; kq
    v_add_u32 v4, 4, v1
    v_and_b32 v3, 7, v4                        ; alpha
    v_bfe_u32 v4, v4, 3, 1                     ; pi
    v_lshrrev_b32 {v('T',1)}, 2, v1            ; r
    v_and_b32 {v('T',2)}, 3, v1                ; c
    v_and_b32 v1, 1, v2                        ; kq1
    v_lshrrev_b32 {v('kqh')}, 1, v2
    v_lshl_add_u32 {v('T',0)}, v2, 3, {v('T',1)}
    v_mul_u32_u24 {v('T',0)}, 576, {v('T',0)}
    v_lshl_add_u32 {v('T',0)}, {v('T',2)}, 3, {v('T',0)}      ; (8kq+r)*576 + c*8
    v_lshl_add_u32 v5, v2, 2, {v('T',1)}
    v_mul_u32_u24 v5, 288, v5
    v_lshl_add_u32 {v('OB8')}, {v('T',2)}, 3, v5              ; (4kq+r)*288 + c*8
    v_lshlrev_b32 {v('T',1)}, 5, v1                           ; 32*kq1
    s_lshl_b32 s45, s3, 5
    v_xor_b32 {v('T',2)}, s45, {v('T',1)}
    v_add_u32 {v('WB',0)}, {v('T',0)}, {v('T',2)}
    s_add_u32 s45, s45, 288
    v_xor_b32 {v('T',2)}, s45, {v('T',1)}
    v_add_u32 {v('WB',1)}, {v('T',0)}, {v('T',2)}
    v_xor_b32 {v('T',2)}, 256, {v('T',1)}
    v_add_u32 {v('WB',2)}, {v('T',0)}, {v('T',2)}
    v_xor_b32 {v('T',2)}, 544, {v('T',1)}
    v_add_u32 {v('WB',3)}, {v('T',0)}, {v('T',2)}
    v_mul_u32_u24 {v('T',3)}, 544, v3
    v_lshl_add_u32 {v('T',3)}, v4, 5, {v('T',3)}
    v_lshl_add_u32 {v('T',3)}, v1, 4, {v('T',3)}
    v_add_u32 {v('T',3)}, {XO}, {v('T',3)}
    v_lshl_add_u32 {v('XK')}, {v('kqh')}, 3, {v('T',3)}
    v_lshlrev_b32 {v('T',0)}, 6, {v('kqh')}
    v_sub_u32 {v('T',4)}, {v('T',3)}, {v('T',0)}       ; T4 = XP
    v_lshlrev_b32 {v('T',0)}, 5, {v('kqh')}
    v_sub_u32 {v('T',5)}, {v('T',4)}, {v('T',0)}       ; T5 = XP8
    """)
    for k, i in enumerate((0, 2)):
        a(f"""
        s_add_u32 s45, s3, {4-i}
        v_sub_u32 {v('T',0)}, s45, {v('kqh')}
        v_lshrrev_b32 {v('T',1)}, 3, {v('T',0)}
        v_lshl_add_u32 {v('T',0)}, {v('T',0)}, 6, {v('T',3)}
        v_lshl_add_u32 {v('T',6+k)}, {v('T',1)}, 5, {v('T',0)}
        """)
    a(f"""
    s_lshr_b32 s45, s3, 2
    s_mul_i32 s66, s45, {82944 - SLOT}
    s_add_u32 s66, s66, s28
    s_mul_i32 s67, s45, {-4*82944}
    s_add_u32 s67, s67, s28
    s_mul_i32 s49, s45, {128*576 - SLOT}
    s_add_u32 s49, s49, s28
    v_mul_u32_u24 {v('T',0)}, 1056, v3
    v_lshl_add_u32 {v('T',0)}, v4, 6, {v('T',0)}
    v_lshl_add_u32 {v('T',0)}, v2, 4, {v('T',0)}
    v_add_u32 {v('XF')}, {XBASE}, {v('T',0)}
    """)
    for j in range(5):
        a(f"""
        s_add_u32 s45, s3, {j}
        s_lshr_b32 s68, s45, 3
        s_lshl_b32 s45, s45, 7
        s_lshl_b32 s68, s68, 5
        s_add_u32 s45, s45, s68
        v_add_u32 {v('XH',j)}, s45, {v('XF')}""")
    for T in range(4): a(f"v_add_u32 {v('WB',4+T)}, {3*SLOT}, {v('WB',T)}")
    a(f"v_mul_u32_u24 v1, 6912, {v('kqh')}")
    for T in range(4): a(f"v_sub_u32 {v('T',T)}, {v('WB',4*((KS%6)//3)+T)}, v1")
    a(f"""
    s_mov_b32 s20, s8
    s_mov_b32 s21, s9
    s_mov_b32 s22, 41472
    s_mov_b32 s23, 0x20000
    s_add_u32 s24, s10, s37
    s_addc_u32 s25, s11, 0
    s_mov_b32 s26, 4608000
    s_mov_b32 s27, 0x20000
    s_mov_b32 s32, {f2u(-LOG2E):#x}
    s_mov_b32 s33, {f2u(-LOG2E):#x}
    s_mov_b32 s34, 1.0
    s_mov_b32 s35, 1.0
    s_mov_b32 s36, {f2u(32.0):#x}
    v_lshlrev_b32 {v('vL')}, 4, {v('lane')}
    s_lshl_b32 s45, s3, 6
    v_add_u32 {v('XKH')}, s45, {v('XK')}
    s_lshr_b32 s69, s3, 1
    s_lshl_b32 s45, s69, 6
    v_add_u32 {v('OB0')}, s45, {v('OB8')}
    v_add_u32 {v('OT0')}, {WOT}, {v('OB0')}
    v_add_u32 {v('OT8')}, {WOT}, {v('OB8')}
    v_mul_u32_u24 v3, {RUN}, v3
    v_mul_u32_u24 v4, 288, v4
    v_lshl_add_u32 v3, v2, 3, v3
    v_add_u32 v3, v3, v4
    s_and_b32 s68, s3, 1
    s_mul_i32 s68, s68, 576
    s_add_u32 s45, s45, {OIMG}
    s_add_u32 s46, s45, s68
    v_add_u32 {v('OW0')}, s46, v3
    s_mul_i32 s46, s69, {8*RUN}
    s_add_u32 s46, s46, s68
    s_add_u32 s46, s46, {OIMG + 256}
    v_add_u32 {v('OW8')}, s46, v3
    s_mul_i32 s45, s3, {RUN}
    s_add_u32 s45, s45, {OIMG}
    v_add_u32 {v('OR')}, s45, {v('vL')}
    s_add_u32 s68, s31, s28
    v_add_u32 {v('OUT')}, s68, {v('vL')}
    v_bfe_u32 v1, {v('lane')}, 3, 2
    v_and_b32 v2, 7, {v('lane')}
    v_lshlrev_b32 v2, 4, v2
    v_mul_u32_u24 v3, {8*RUN}, v1
    v_add3_u32 {v('ORL')}, v3, v2, s45
    v_mul_u32_u24 v3, 1152, v1
    v_add3_u32 {v('OUTL')}, v3, v2, s68
    ; z exchange
    s_lshl_b32 s45, s69, 13
    s_and_b32 s68, s3, 1
    s_lshl_b32 s46, s68, 3
    s_add_u32 s45, s45, s46
    s_add_u32 s45, s45, {XBASE}
    v_add_u32 {v('ZW')}, s45, {v('vL')}
    s_lshl_b32 s46, s68, 10
    s_add_u32 s46, s46, {XBASE}
    v_add_u32 {v('ZR0')}, s46, {v('vL')}
    v_lshlrev_b32 v1, 3, {v('lane')}
    v_add_u32 v1, {XBASE + 32768}, v1
    s_lshl_b32 s45, s3, 9
    v_add_u32 {v('Z8W')}, s45, v1
    s_lshl_b32 s46, s68, 9
    v_add_u32 {v('Z8R')}, s46, v1
    """)
    def wreads(s):
        rho = s % 6; half = rho // 3; buf = s & 1
        L = []
        for T in range(4):
            if s != KS:
                for e2 in range(2):
                    L.append(f"ds_read_b64_tr_b16 {rng('a', aW(buf,T)+2*e2, 2)}, {v('WB',4*half+T)} offset:{(rho%3)*SLOT + e2*2304}")
            else:
                L.append(f"ds_read_b64_tr_b16 {rng('a', aW(buf,T), 2)}, {v('T',T)} offset:{(rho%3)*SLOT}")
        return L
    def need(s):
        c, i = step_info(s)
        return [(c, p - i + 4) for p in range(8)]
    def xread(key, reg):
        c, q = key
        if c == "o": return f"ds_read_b128 {rng('a',reg,4)}, {v('T',5) if q==8 else v('T',4)} offset:{q*64 + (32 if q>=8 else 0)}"
        return f"ds_read_b128 {rng('a',reg,4)}, {v('XF')} offset:{c*XCH + q*128 + (32 if q>=8 else 0)}"
    def hread(s):
        c, i = step_info(s); reg = aH(s)
        if c == "o": return f"ds_read_b128 {rng('a',reg,4)}, {v('T',6+i//2)}"
        return f"ds_read_b128 {rng('a',reg,4)}, {v('XH',4-i)} offset:{c*XCH}"
    kreads = [f"ds_read_b64 {rng('a',aK(p),2)}, {v('XK')} offset:{p*64}" for p in range(8)] + [f"ds_read_b64 {rng('a',aK(8),2)}, {v('XKH')}"]
    lastuse = {}; firstuse = {}
    for s in range(23):
        if s == KS: continue
        for k in need(s):
            lastuse[k] = s; firstuse.setdefault(k, s)
    free = list(range(16)); loc = {}
    avail = sched["avail"]
    xorder = sorted(firstuse, key=lambda k: (firstuse[k], k[1]))
    def xprefetch(s, maxn):
        L = []
        for k in xorder:
            if k in loc: continue
            must = firstuse[k] == s + 1
            if not must and (len(L) >= maxn or avail[k[0]] > s or not free): break
            assert avail[k[0]] <= s, (k, s)
            loc[k] = free.pop(0)
            L.append(xread(k, POOL0 + 4*loc[k]))
        return L
    def release(s):
        for k, l in loc.items():
            if lastuse[k] == s: free.append(l)
    def mfmas(s):
        buf = s & 1
        L = []
        nd = need(s)
        for T in range(4):
            for p in range(8 if T < 2 else 1):
                u = 8*T + p if T < 2 else 14 + T
                D = rng('v', acc(u), 4)
                C = "0" if s == 0 else D
                if s != KS:
                    B = POOL0 + 4*loc[nd[p]] if T < 2 else aH(s)
                    L.append(f"v_mfma_f32_16x16x32_bf16 {D}, {rng('a',aW(buf,T),4)}, {rng('a',B,4)}, {C}")
                else:
                    B = aK(p if T < 2 else 8)
                    L.append(f"v_mfma_f32_16x16x16_bf16 {D}, {rng('a',aW(buf,T),2)}, {rng('a',B,2)}, {C}")
        return L
    a("s_cmp_ge_u32 s3, 4")
    a("s_cselect_b64 vcc, -1, 0")
    if aprio:
        a("s_cbranch_scc1 L_noprio")
        a("s_setprio 1")
        a("L_noprio:")
    stamp("i2")
    issue("AB", ["w0"])
    a(f"s_waitcnt vmcnt({vwait('A', ['x0'])})")
    a("s_barrier")
    stamp("i3")
    xr = xprefetch(-1, 16) + [hread(0), hread(1)]
    for ins in item("w1"):
        a(ins)
        if ins.startswith("buffer_load"):
            vq["A"].append("w1"); vq["B"].append("w1")
        if (ins.startswith("buffer_load") and "offset" in ins) or ins.endswith("exec_hi, -1"):
            for _ in range(4):
                if xr: E(xr.pop(0))
    assert not xr
    a(f"s_waitcnt vmcnt({vwait('A', ['w0'])})")
    stamp("i4")
    a("s_barrier")
    stamp()
    emit(wreads(0))
    ool = Asm()
    WREGS = {('a', k) for k in range(32)}
    def outofline(lab, fn):
        nonlocal a
        main = a; a = ool
        a(f"{lab}:"); fn(); a(f"s_branch {lab}r")
        a = main
        a(f"{lab}r:")
    for s in range(23):
        rd = []
        if s < 22: rd += wreads(s + 1)
        if s < 21: rd += xprefetch(s, 3) + ([hread(s + 1)] if s > 0 and s + 1 != KS else [])
        if s == 20:
            rd += [hread(22)]
            assert len(loc) == len(xorder)
        if 3 <= s <= 5: rd += kreads[3*(s-3): 3*(s-3)+3]
        M = mfmas(s)
        assert len(rd) <= len(M)
        if s in sched["B"]:
            a(f"s_cbranch_vccnz L_dB{s}")
            outofline(f"L_dB{s}", lambda: (a("s_setprio 2"), issue("B", sched["B"][s]), a("s_setprio 0")))
        for k, mm in enumerate(M):
            E(mm)
            if k < len(rd): E(rd[k])
        release(s)
        tags = sched["bars"].get(s + 1)
        itemsA = sched["A"].get(s, [])
        nB = vwait("B", tags) if tags else None
        nA0 = vwait("A", tags) if tags else None
        n = lneed(None if s + 1 == 21 else WREGS) if tags else None
        lg = f" lgkmcnt({n})" if n is not None else ""
        if itemsA or nA0 != nB:
            a(f"s_cbranch_vccz L_dA{s}")
            if nB is not None or lg: a("s_waitcnt" + (f" vmcnt({nB})" if nB is not None else "") + lg)
            def blk():
                issue("A", itemsA)
                nA = vwait("A", tags) if tags else None
                if nA is not None or lg: a("s_waitcnt" + (f" vmcnt({nA})" if nA is not None else "") + lg)
            outofline(f"L_dA{s}", blk)
        elif tags:
            a("s_waitcnt" + (f" vmcnt({nB})" if nB is not None else "") + lg)
        if tags:
            a("s_barrier")
            stamp(f"b{s+1}")
    stamp()
    if aprio: a("s_setprio 0")
    def aO(u, kap): return 18*u + 4*kap
    wo_reads = []
    for u in range(3):
        toff = 32*u if u < 2 else 256
        wo_reads.append(f"ds_read_b64_tr_b16 {rng('a', aO(u,4), 2)}, {v('OT0') if u < 2 else v('OT8')} offset:{toff}")
        for kap in range(4):
            for e2 in range(2):
                wo_reads.append(f"ds_read_b64_tr_b16 {rng('a', aO(u,kap)+2*e2, 2)}, {v('OB0') if u < 2 else v('OB8')} offset:{kap*9216 + e2*4608 + toff}")
    def act(pairs, dst):
        L = []
        P = [(F+2*h, G+2*h) for (F,G) in pairs for h in range(2)]
        for (F,G) in P: L.append(f"v_pk_mul_f32 v[{F}:{F+1}], v[{F}:{F+1}], s[32:33]")
        for (F,G) in P: L.append(f"v_pk_mul_f32 v[{G}:{G+1}], v[{G}:{G+1}], s[32:33]")
        for (F,G) in P: L += [f"v_min_f32 v{F}, s36, v{F}", f"v_min_f32 v{F+1}, s36, v{F+1}"]
        for (F,G) in P: L += [f"v_exp_f32 v{G}, v{G}", f"v_exp_f32 v{G+1}, v{G+1}"]
        for (F,G) in P: L += [f"v_exp_f32 v{F}, v{F}", f"v_exp_f32 v{F+1}, v{F+1}"]
        for k,(F,G) in enumerate(P):
            T = V['T'] + 2*k
            L.append(f"v_pk_fma_f32 v[{T}:{T+1}], v[{F}:{F+1}], v[{F}:{F+1}], s[34:35]")
        for k,(F,G) in enumerate(P):
            T = V['T'] + 2*k
            L.append(f"v_pk_fma_f32 v[{G}:{G+1}], v[{T}:{T+1}], v[{G}:{G+1}], v[{T}:{T+1}]")
        for (F,G) in P: L += [f"v_rcp_f32 v{G}, v{G}", f"v_rcp_f32 v{G+1}, v{G+1}"]
        for (F,G) in P: L.append(f"v_pk_fma_f32 v[{F}:{F+1}], v[{F}:{F+1}], v[{F}:{F+1}], s[34:35] neg_lo:[1,0,0] neg_hi:[1,0,0]")
        for (F,G) in P: L.append(f"v_pk_mul_f32 v[{F}:{F+1}], v[{F}:{F+1}], v[{G}:{G+1}]")
        for k,(F,G) in enumerate(P): L.append(f"v_cvt_pk_bf16_f32 v{dst[k]}, v{F}, v{F+1}")
        return L
    AZ = 56
    def aZ(kap): return AZ + 4*kap
    AS = 80
    D8 = acc(16)
    def actg(g):
        p0, p1 = 2*g, 2*g+1
        return act([(acc(p0), acc(8+p0)), (acc(p1), acc(8+p1))], [acc(8+p0), acc(8+p0)+1, acc(8+p1), acc(8+p1)+1])
    def zwrite(g):
        return [f"ds_write_b64 {v('ZW')}, {rng('v', acc(8+p), 2)} offset:{p*1024}" for p in (2*g, 2*g+1)]
    def zreads(g):
        L = [f"ds_read_b64 {rng('a', aZ(4), 2)}, {v('Z8R')} offset:{2*g*512}"]
        for kap in range(4):
            L.append(f"ds_read_b128 {rng('a', aZ(kap), 4)}, {v('ZR0')} offset:{kap*8192 + 2*g*1024}")
        return L
    def oacc(g, u): return acc(2*g + u)
    def gm(g):
        L = [f"v_mfma_f32_16x16x16_bf16 {rng('v',oacc(g,u),4)}, {rng('a',aO(u,4),2)}, {rng('a',aZ(4),2)}, 0" for u in range(2)]
        L.append(f"v_mfma_f32_16x16x16_bf16 {rng('v',D8,4)}, {rng('a',aO(2,4),2)}, {rng('a',aZ(4),2)}, 0")
        for kap in range(4):
            for u in range(2):
                D = rng('v', oacc(g,u), 4)
                L.append(f"v_mfma_f32_16x16x32_bf16 {D}, {rng('a',aO(u,kap),4)}, {rng('a',aZ(kap),4)}, {D}")
        return L
    def gout(g):
        L = []
        for u in range(2):
            A_ = oacc(g, u)
            L += [f"v_cvt_pk_bf16_f32 v{A_}, v{A_}, v{A_+1}", f"v_cvt_pk_bf16_f32 v{A_+1}, v{A_+2}, v{A_+3}",
                  f"ds_write_b64 {v('OW0')}, {rng('v', A_, 2)} offset:{g*8*RUN + 32*u}"]
        return L
    def g8m(g):
        a(f"s_cmp_eq_u32 s69, {g}")
        a(f"s_cbranch_scc0 L_g8m{g}")
        D = rng('v', D8, 4)
        for kap in range(4):
            a(f"v_mfma_f32_16x16x32_bf16 {D}, {rng('a',aO(2,kap),4)}, {rng('a',aZ(kap),4)}, {D}")
        a(f"L_g8m{g}:")
    def g8w(g):
        a(f"s_cbranch_scc0 L_g8w{g}")
        a(f"v_cvt_pk_bf16_f32 v{D8}, v{D8}, v{D8+1}")
        a(f"v_cvt_pk_bf16_f32 v{D8+1}, v{D8+2}, v{D8+3}")
        a(f"ds_write_b64 {v('OW8')}, {rng('v', D8, 2)}")
        a(f"L_g8w{g}:")
    def sread(g): return f"ds_read_b128 {rng('a', AS + 4*(g&1), 4)}, {v('OR')} offset:{g*8*RUN}"
    def sstore(g):
        n = lneed(opregs(rng('a', AS + 4*(g&1), 4)))
        if n is not None: a(f"s_waitcnt lgkmcnt({n})")
        a(f"buffer_store_dwordx4 {rng('a', AS + 4*(g&1), 4)}, {v('OUT')}, s[24:27], 0 offen offset:{g*1152}{store_mod}")
    def endbeat(j):
        lneed(None)
        a("s_waitcnt lgkmcnt(0)")
        a("s_barrier")
        if eprio: a("s_setprio 2")
        stamp(f"e{j}")
    wq = list(wo_reads)
    L8 = act([(acc(16), acc(17))], [V['Z'], V['Z']+1])
    for k, ins in enumerate(actg(0)):
        a(ins)
        if k % 2 == 1 and wq: E(wq.pop(0))
    emit(zwrite(0))
    for ins in L8: a(ins)
    E(f"ds_write_b64 {v('Z8W')}, {rng('v', V['Z'], 2)}")
    assert not wq
    for j in range(1, 5):
        g = j - 1
        M = gm(g)
        if j <= 3:
            L = actg(j)
            b = bdelay
            slots = {26: [0], 27: [1], 28: [2], 40: [3], 41: [4], 42: [5], 43: [6], 44: [7], 45: [8], 46: [9], 47: [10]}
            rq = []
            for k, ins in enumerate(L):
                if k == b:
                    endbeat(j-1)
                    rq = zreads(g) + ([sread(j-2)] if j >= 2 else [])
                if k >= b and (k - b) % 2 == 0 and rq: E(rq.pop(0))
                if eprio and k == 36: a("s_setprio 1")
                if eprio and k == 56: a("s_setprio 0")
                a(ins)
                for m in slots.get(k, []): E(M[m])
                if k == 38 and j >= 2: sstore(j-2)
                if k == 47: g8m(g)
            emit(zwrite(j))
            emit(gout(g))
            g8w(g)
        else:
            endbeat(j-1)
            emit(zreads(g))
            E(sread(j-2))
            E(M[0]); E(M[1]); E(M[2])
            sstore(j-2)
            a("s_nop 3")
            for mm in M[3:]: E(mm)
            g8m(g)
            a("s_nop 7")
            emit(gout(g))
            g8w(g)
    endbeat(4)
    E(sread(3))
    E(f"ds_read_b128 {rng('a', AS, 4)}, {v('ORL')} offset:1024")
    sstore(3)
    a("s_waitcnt lgkmcnt(0)")
    a("s_mov_b32 exec_hi, 0")
    a(f"buffer_store_dwordx4 {rng('a', AS, 4)}, {v('OUTL')}, s[24:27], 0 offen offset:1024{store_mod}")
    if stamps:
        stamp()
        a("s_waitcnt vmcnt(0)")
        stamp()
        emit_stamps2(a, stamp_n[0], v('lane'))
    a("L_end:")
    a("s_endpgm")
    a.lines += ool.lines
    return wrap(a.text(), 250, 512, LDS_BYTES, vgpr=256, sgpr=102, accum=128)

if __name__ == "__main__":
    import copy
    P = ["i3","b1","b3","b5","b7","b9","b11","b13","b15","b21"]
    Q = ["b1","b21","e0","e1","e2","e3","e4"]
    open("v11.s","w").write(gen())
    open("v11a_st.s","w").write(gen(stamps=P))
    S = copy.deepcopy(SCHED1); del S["B"][0]; S["B"][1] = ["w2","w3"]; S["A"][0] = ["w2"]; S["A"][2] = ["w3","wb"]; S["B"][3] = ["w4"]; S["A"][4] = ["x1","xh","w4"]
    open("v11b_st.s","w").write(gen(stamps=P, sched=S))
```

```python
import sys, struct
from asmlib import *

SLOT = 18432
XBASE = 6 * SLOT
XCH = 8960
def XCO(c): return c * XCH + (512 if c >= 2 else 0)
XDUMMY = XBASE + 2 * XCH
XO = XBASE + 4 * XCH + 512
WOT = XO + 5 * 1024
LDS_BYTES = WOT + 4608
ZB = 0
OIMG = 2 * SLOT
OPOS = [XBASE, 5 * SLOT]
RUN = 1168
LOG2E = 1.4426950408889634
def f2u(x): return struct.unpack("<I", struct.pack("<f", x))[0]
def rng(p, b, n): return f"{p}[{b}:{b+n-1}]"
def lines(s): return [l.split(';')[0].strip() for l in s.split("\n") if l.split(';')[0].strip()]
def magic(d, n, sh=20):
    m = -(-(1 << sh) // d)
    assert all(((L*m) >> sh) == L//d for L in range(n)) and m < (1 << 24) and m*n < (1 << 32)
    return m, sh

STEPS = [("k",4), ("o",0), ("o",2)] + [(c,i) for c in range(4) for i in range(5)]
def S(s, k=0): return 18*s + k
PLAN_K = dict(
    preA = ["s2"], preB = ["s1"],
    sync = [
      (S(0),    [],                 ["xo","s0"],       ["x0","s3"]),
      (S(0,12), ["x0","h0"],        ["s1"],            []),
      (S(1,12), ["s4"],             ["s2"],            ["s5"]),
      (S(2,8),  ["wb"],             ["x0","h0","s3"],  ["s6"]),
      (S(3,9),  [],                 ["s4","s5"],       ["s7"]),
      (S(5),    ["s8","xp"],        ["s6","s7"],       ["s9","x1"]),
      (S(7),    ["x1","xh","s10"],  ["s8","s9"],       ["s11"]),
      (S(7,9),  [],                 ["x1","xh"],       []),
      (S(9),    ["s12"],            ["s10","s11"],     ["x2","s13","s15"]),
      (S(11),   ["x2","s14"],       ["s12","s13"],     ["wo","wot","s17"]),
      (S(12),   [],                 ["x2"],            []),
      (S(13),   ["wot","s16"],      ["s14","s15"],     ["x3","s19"]),
      (S(15),   ["x3","s18"],       ["s16","s17"],     ["s21"]),
      (S(17),   ["s20"],            ["s18","s19","x3"],["s22"]),
      (S(19),   [],                 ["s20","s21"],     ["o1"]),
      (S(20),   ["o0"],             None,              []),
      (S(21),   [],                 ["s22","o0","o1","wot","ALLX"], []),
    ],
    opos = 0, oimg = 2,
)

def gen(stamps=False, store_mod=" sc0 sc1", xmod=" nt", plan=PLAN_K, bdelay=24, rstep=2, x32at=39, plain0="AB", bB=8, look=60):
    a = Asm()
    KS = STEPS.index(("k",4))
    ACC = 8
    def acc(u): return ACC + 4*u
    V = {}
    nxt = [80]
    def valloc(name, n=1, align=1):
        while nxt[0] % align: nxt[0] += 1
        V[name] = nxt[0]; nxt[0] += n
        assert nxt[0] <= 128, name
        return V[name]
    for nm in ["lane","kqh","vW","vL"]: valloc(nm)
    valloc("WB", 8)
    valloc("XF"); valloc("XH", 5); valloc("XK"); valloc("XKH"); valloc("XC")
    for nm in ["OB0","OB8","OT0","OT8","ZW","ZR0","Z8W","OW0","OW8","OR","ORL","OUT","OUTL","Z8R","JUNK"]: valloc(nm)
    valloc("T", 8, 2)
    valloc("Z", 2, 2)
    v = lambda nm, i=0: f"v{V[nm]+i}"
    stamp_n = [0]
    def stamp(name="x"):
        if stamps and (name == "x" or name in stamps):
            k = stamp_n[0]; stamp_n[0] += 1
            a(f"s_memtime s[{SB+2*k}:{SB+1+2*k}]")
    vq = {"A": [], "B": []}
    def vwait(g, tags):
        idx = [i for i,t in enumerate(vq[g]) if t in tags]
        return len(vq[g]) - 1 - max(idx) if idx else None
    lq = []
    def opregs(tok):
        tok = tok.strip()
        if tok[0] not in 'av' or '[' not in tok: return set()
        r = tok[2:-1].split(':')
        return {(tok[0], k) for k in range(int(r[0]), int(r[1])+1)}
    def lneed(regs):
        last = -1
        for i, t in enumerate(lq):
            if regs is None or (t & regs): last = i
        if last < 0: return None
        n = min(len(lq) - 1 - last, 14)
        del lq[:len(lq)-n]
        return n
    def E(ins):
        if ins.startswith('ds_') and len(lq) >= 15:
            a("s_waitcnt lgkmcnt(8)"); del lq[:len(lq)-8]; E(ins)
        elif ins.startswith('ds_read'):
            defer_need(ins.split(',')[1].split()[0])
            r = opregs(ins.split(None,1)[1].split(',')[0])
            if "_tr_" in ins: r.add("tr")
            lq.append(r); a(ins)
        elif ins.startswith('ds_write'):
            lq.append({('w', 0)}); a(ins)
        elif ins.startswith('v_mfma'):
            ops = ins.split(None, 1)[1].split(',')
            n = lneed(opregs(ops[1]) | opregs(ops[2]))
            if n is not None: a(f"s_waitcnt lgkmcnt({n})")
            a(ins)
        else: a(ins)
    def emit(grp):
        for ins in grp: E(ins)
    def five(vo, srd, m0, so):
        L = [m0, so, "s_mov_b32 exec_hi, 0", f"buffer_load_dwordx4 {vo}, {srd}, s30 offen lds", "s_mov_b32 exec_hi, -1"]
        return L + [f"buffer_load_dwordx4 {vo}, {srd}, s30 offen offset:{512+1024*j} lds" for j in range(4)]
    def item(name):
        if name[0] == "s":
            n = int(name[1:]); c, i = STEPS[n]
            m0 = f"s_add_u32 m0, s29, {(n % 6) * SLOT}"
            if c == "k": so = f"s_add_u32 s30, s29, {4*82944 + 128*576}"
            elif c == "o": so = f"s_add_u32 s30, s49, {i*82944 + 128*576}"
            else: so = f"s_add_u32 s30, s29, {i*82944 + c*SLOT}"
            return five(v('vW'), "s[16:19]", m0, so)
        if name in ("o0", "o1"):
            h = int(name[1])
            return five(v('vL'), "s[20:23]", f"s_add_u32 m0, s29, {OPOS[h]}", f"s_add_u32 s30, s29, {h*SLOT}")
        if name in ("x0","x1","x2","x3"):
            c = int(name[1])
            return [f"s_add_u32 m0, s43, {XCO(c)}", f"s_movk_i32 s30, {64*c}", f"buffer_load_dwordx4 {v('XC')}, s[12:15], s30 offen{xmod} lds"]
        if name in ("xh", "h0"):
            if name == "xh":
                pre = f"""
                s_mul_i32 s48, s3, {XCH}
                s_and_b32 s30, s3, 2
                s_lshl_b32 s30, s30, 8
                s_add_u32 s48, s48, s30
                s_add_u32 s48, s48, {XBASE + 8*1056}
                s_mul_i32 s30, s3, {64 - 4608}
                s_add_u32 s30, s30, {8*4608}
                s_cmp_lg_u32 s3, 0"""
            else:
                pre = f"""
                s_mov_b32 s48, {XBASE + 8*1056}
                s_movk_i32 s30, {5*4608}
                s_cmp_eq_u32 s3, 3"""
            return lines(pre + f"""
            s_cselect_b32 m0, s48, {XDUMMY}
            s_cselect_b32 s30, s30, 0x7ff00000
            v_add_u32 v7, s30, {v('XC')}
            s_mov_b32 exec_hi, 0
            buffer_load_dwordx4 v7, s[12:15], 0 offen{xmod} lds
            s_mov_b32 exec_hi, -1""")
        if name == "xp":
            return lines(f"""
            v_lshrrev_b32 v6, 2, {v('lane')}
            v_mul_u32_u24 v6, 1152, v6
            v_and_b32 v7, 3, {v('lane')}
            v_min_u32 v7, 2, v7
            v_lshl_add_u32 v6, v7, 8, v6
            s_mul_i32 s30, s3, {9*1152}
            s_add_u32 s30, s30, s38
            v_add_u32 v6, s30, v6
            s_mov_b32 exec_hi, 15
            buffer_load_dword {v('JUNK')}, v6, s[12:15], 0 offen offset:128{xmod}
            s_mov_b32 exec_hi, -1""")
        if name == "wb":
            return lines(f"""
            s_lshl_b32 s30, s70, 2
            s_add_u32 s30, s30, s3
            s_mul_i32 s30, s30, {27*128}
            v_lshl_add_u32 v6, {v('lane')}, 7, s30
            s_mov_b64 exec, {(1<<27)-1}
            buffer_load_dword {v('JUNK')}, v6, s[16:19], 0 offen
            s_mov_b64 exec, -1""")
        if name == "wo":
            return lines(f"""
            s_lshl_b32 s30, s70, 2
            s_add_u32 s30, s30, s3
            s_mul_i32 s30, s30, {3*128}
            s_sub_u32 s30, s30, {4*3*128}
            v_lshl_add_u32 v6, {v('lane')}, 7, s30
            s_mov_b64 exec, 7
            buffer_load_dword {v('JUNK')}, v6, s[20:23], 0 offen
            s_mov_b64 exec, -1""")
        if name == "wot":
            return lines(f"""
            s_mul_i32 s30, s3, 576
            s_add_u32 m0, s30, {WOT}
            s_add_u32 s30, s30, {128*288}
            s_mov_b32 exec_hi, 15
            buffer_load_dwordx4 {v('vL')}, s[20:23], s30 offen lds
            s_mov_b32 exec_hi, -1""")
        raise ValueError(name)
    released = set(range(-6, 0))
    def issue(g, names):
        for nm in names:
            if ":" in nm:
                nm, r = nm.split(":"); lo, hi = map(int, r.split("-"))
                assert int(nm[1:]) - 6 in released, nm
                L = item(nm)
                P = [L[2:5]] + [[x] for x in L[5:]]
                a(L[0]); a(L[1])
                for grp in P[lo:hi+1]:
                    for ins in grp:
                        a(ins)
                        if ins.startswith("buffer_load"): vq[g].append(nm)
                continue
            if nm[0] == "s": assert int(nm[1:]) - 6 in released, nm
            if nm == "o1": assert 17 in released
            if nm == "o0": assert "x01" in released
            for ins in item(nm):
                a(ins)
                if ins.startswith("buffer_load"): vq[g].append(nm)
    if stamps: a("s_memrealtime s[40:41]")
    stamp()
    WAL = (16 + plan.get('warows', 32)) * 576 // 128
    WAN = -(-5*WAL // 31)
    m216, sh216 = magic(WAL, 32*WAN+64)
    m34, sh34 = magic(34, 320, 16)
    a(f"""
    s_load_dwordx8 s[4:11], s[0:1], 0
    s_cmp_ge_u32 s2, 250
    s_cbranch_scc1 L_end
    v_lshrrev_b32 v1, 6, v0
    v_and_b32 {v('lane')}, 63, v0
    s_cmp_ge_u32 s2, 125
    v_readfirstlane_b32 s3, v1
    s_cselect_b32 s31, 125, 0
    s_cselect_b32 s37, 4608000, 0
    s_sub_u32 s31, s2, s31
    s_mul_i32 s31, s31, {128*288}
    s_sub_u32 s38, s31, {8*288}
    s_and_b32 s44, s3, 3
    s_mul_i32 s29, s44, 4608             ; s29 = (w&3)*4608
    s_cmp_eq_u32 s3, 2                   ; odd image piece: waves 4..7 -> 0..3, wave 2 -> 4
    s_cselect_b32 s44, 4, s44
    s_lshl_b32 s30, s44, 6
    v_add_u32 v2, s30, {v('lane')}
    v_mul_u32_u24 v3, {m34}, v2
    v_lshrrev_b32 v3, {sh34}, v3
    v_lshrrev_b32 v2, 1, v2
    v_sub_u32 v2, v2, v3
    v_mul_u32_u24 v2, 288, v2
    v_and_b32 v3, 1, v0
    v_lshl_add_u32 v2, v3, 4, v2
    v_add_u32 v7, s38, v2
    s_lshl_b32 s39, s44, 10
    s_add_u32 s39, s39, {XO}
    s_and_b32 s45, s3, 1
    s_lshl_b32 s45, s45, 1
    v_xor_b32 v2, s45, {v('lane')}
    v_lshlrev_b32 {v('vW')}, 4, v2
    s_lshr_b32 s70, s2, 3
    s_mul_i32 s30, s70, {WAN}
    v_add_u32 v6, s30, {v('lane')}
    v_mul_u32_u24 v2, {m216}, v6
    v_lshrrev_b32 v2, {sh216}, v2
    v_mul_u32_u24 v2, {82944 - WAL*128}, v2
    v_lshl_add_u32 v6, v6, 7, v2
    v_subrev_u32 v6, 9216, v6            ; first-needed W lines: [i*82944-9216, i*82944+18432), 35 lines per workgroup
    s_mov_b32 s14, 4608000
    s_mov_b32 s15, 0x20000
    s_mov_b32 s18, 414720
    s_mov_b32 s19, 0x20000
    s_movk_i32 s30, 256
    s_mov_b32 m0, s39
    s_waitcnt lgkmcnt(0)
    s_add_u32 s12, s4, s37
    s_addc_u32 s13, s5, 0
    s_mov_b32 s16, s6
    s_mov_b32 s17, s7
    s_cmp_ge_u32 s3, 4
    s_cbranch_scc1 L_odd
    s_cmp_lt_u32 s3, 2
    s_cbranch_scc1 L_k16
    s_mov_b32 exec_hi, 0
    s_cmp_eq_u32 s3, 2
    s_cbranch_scc1 L_odd
    s_mov_b32 exec_hi, {(1 << (WAN-32)) - 1}
    buffer_load_dword {v('JUNK')}, v6, s[16:19], 0 offen
    L_codepf:
    s_getpc_b64 s[50:51]
    s_lshl_b32 s30, s70, 9
    s_min_u32 s30, s30, L_last-L_codepf-512
    v_lshl_add_u32 v6, {v('lane')}, 7, s30
    s_mov_b64 exec, 31
    global_load_dword {v('JUNK')}, v6, s[50:51] offset:-8
    s_branch L_fdone
    L_k16:
    """)
    assert KS == 0
    for ins in item("s0"): a(ins)
    a(f"""
    s_branch L_fdone
    L_odd:
    buffer_load_dwordx4 v7, s[12:15], s30 offen{xmod} lds
    L_fdone:
    s_mov_b64 exec, -1
    """)
    vq["A"].append("s0"); vq["B"].append("xo")
    stamp("i1")
    a(f"""
    s_mul_i32 s28, s3, 4608
    v_lshrrev_b32 v5, 2, {v('lane')}
    v_mul_u32_u24 v5, 288, v5
    v_and_b32 v3, 3, v0
    v_lshl_add_u32 v5, v3, 4, v5
    s_add_u32 s30, s28, s38
    v_add_u32 {v('XC')}, s30, v5
    s_mul_i32 s43, s3, 1056
    s_add_u32 s43, s43, {XBASE}
    s_bfe_u32 s49, s3, 0x10001
    s_mul_i32 s49, s49, {82944 - 9216}
    s_add_u32 s49, s49, s29              ; s49 = ((w>>1)&1)*82944 + (w&1)*4608
    v_and_b32 v1, 15, {v('lane')}              ; n
    v_lshrrev_b32 v2, 4, {v('lane')}           ; kq
    v_add_u32 v4, 4, v1
    v_and_b32 v3, 7, v4                        ; alpha
    v_bfe_u32 v4, v4, 3, 1                     ; pi
    v_lshrrev_b32 {v('T',1)}, 2, v1            ; r
    v_and_b32 {v('T',2)}, 3, v1                ; c
    v_and_b32 v1, 1, v2                        ; kq1
    v_lshrrev_b32 {v('kqh')}, 1, v2
    v_lshl_add_u32 {v('T',0)}, v2, 3, {v('T',1)}
    v_mul_u32_u24 {v('T',0)}, 576, {v('T',0)}
    v_lshl_add_u32 {v('T',0)}, {v('T',2)}, 3, {v('T',0)}      ; (8kq+r)*576 + c*8
    v_lshl_add_u32 v5, v2, 2, {v('T',1)}
    v_mul_u32_u24 v5, 288, v5
    v_lshl_add_u32 {v('OB8')}, {v('T',2)}, 3, v5              ; (4kq+r)*288 + c*8
    v_lshlrev_b32 {v('T',1)}, 5, v1                           ; 32*kq1
    s_lshl_b32 s45, s3, 5
    v_xor_b32 {v('T',2)}, s45, {v('T',1)}
    v_add_u32 {v('WB',0)}, {v('T',0)}, {v('T',2)}
    s_add_u32 s45, s45, 288
    v_xor_b32 {v('T',2)}, s45, {v('T',1)}
    v_add_u32 {v('WB',1)}, {v('T',0)}, {v('T',2)}
    v_xor_b32 {v('T',2)}, 256, {v('T',1)}
    v_add_u32 {v('WB',2)}, {v('T',0)}, {v('T',2)}
    v_xor_b32 {v('T',2)}, 544, {v('T',1)}
    v_add_u32 {v('WB',3)}, {v('T',0)}, {v('T',2)}
    v_mul_u32_u24 {v('T',3)}, 544, v3
    v_lshl_add_u32 {v('T',3)}, v4, 5, {v('T',3)}
    v_lshl_add_u32 {v('T',3)}, v1, 4, {v('T',3)}
    v_add_u32 {v('T',3)}, {XO}, {v('T',3)}
    v_lshl_add_u32 {v('XK')}, {v('kqh')}, 3, {v('T',3)}
    v_lshlrev_b32 {v('T',0)}, 6, {v('kqh')}
    v_sub_u32 {v('T',4)}, {v('T',3)}, {v('T',0)}       ; T4 = XP
    v_lshlrev_b32 {v('T',0)}, 5, {v('kqh')}
    v_sub_u32 {v('T',5)}, {v('T',4)}, {v('T',0)}       ; T5 = XP8
    """)
    for k, i in enumerate((0, 2)):
        a(f"""
        s_add_u32 s45, s3, {4-i}
        v_sub_u32 {v('T',0)}, s45, {v('kqh')}
        v_lshrrev_b32 {v('T',1)}, 3, {v('T',0)}
        v_lshl_add_u32 {v('T',0)}, {v('T',0)}, 6, {v('T',3)}
        v_lshl_add_u32 {v('T',6+k)}, {v('T',1)}, 5, {v('T',0)}
        """)
    a(f"v_mul_u32_u24 v1, 6912, {v('kqh')}")
    for T in range(4): a(f"v_sub_u32 {v('T',T)}, {v('WB',T)}, v1")
    a(f"""
    s_lshl_b32 s45, s3, 6
    v_add_u32 {v('XKH')}, s45, {v('XK')}
    s_cmp_ge_u32 s3, 4
    s_cselect_b64 vcc, -1, 0             ; vcc != 0 <=> waves 4..7 (kept to the end)
    """)
    dtxt = f"""
    v_mul_u32_u24 v1, 1056, v3
    v_lshl_add_u32 v1, v4, 6, v1
    v_lshl_add_u32 v1, v2, 4, v1
    v_add_u32 {v('XF')}, {XBASE}, v1
    """
    for T in range(4): dtxt += f"v_add_u32 {v('WB',4+T)}, {3*SLOT}, {v('WB',T)}\n"
    for j in (4, 3, 2, 1, 0):
        dtxt += f"""
        s_add_u32 s45, s3, {j}
        s_lshr_b32 s68, s45, 3
        s_lshl2_add_u32 s45, s45, s68
        s_lshl_b32 s45, s45, 5
        v_add_u32 {v('XH',j)}, s45, {v('XF')}"""
    dtxt += f"""
    s_mov_b32 s20, s8
    s_mov_b32 s21, s9
    s_mov_b32 s22, 41472
    s_mov_b32 s23, 0x20000
    s_add_u32 s24, s10, s37
    s_addc_u32 s25, s11, 0
    s_mov_b32 s26, 4608000
    s_mov_b32 s27, 0x20000
    s_mov_b32 s32, {f2u(-LOG2E):#x}
    s_mov_b32 s33, {f2u(-LOG2E):#x}
    s_mov_b32 s34, 1.0
    s_mov_b32 s35, 1.0
    s_mov_b32 s36, {f2u(32.0):#x}
    v_lshlrev_b32 {v('vL')}, 4, {v('lane')}
    s_lshr_b32 s69, s3, 1
    s_lshl_b32 s45, s69, 6
    v_add_u32 {v('OT8')}, {WOT}, {v('OB8')}
    v_add_u32 {v('OT0')}, s45, {v('OT8')}
    v_add_u32 {v('OB8')}, {OPOS[1]}, {v('OB8')}
    v_add_u32 {v('OB0')}, s45, {v('OB8')}
    v_mul_u32_u24 v3, {RUN}, v3
    v_mul_u32_u24 v4, 288, v4
    v_lshl_add_u32 v3, v2, 3, v3
    v_add_u32 v3, v3, v4
    s_and_b32 s68, s3, 1
    s_mul_i32 s68, s68, 576
    s_add_u32 s45, s45, {OIMG}
    s_add_u32 s46, s45, s68
    v_add_u32 {v('OW0')}, s46, v3
    s_add_u32 s46, s68, {OIMG + 256}
    v_add_u32 {v('OW8')}, s46, v3
    s_mul_i32 s45, s3, {RUN}
    s_add_u32 s45, s45, {OIMG}
    v_add_u32 {v('OR')}, s45, {v('vL')}
    s_add_u32 s68, s31, s28
    v_add_u32 {v('OUT')}, s68, {v('vL')}
    v_bfe_u32 v1, {v('lane')}, 3, 2
    v_and_b32 v2, 7, {v('lane')}
    v_lshlrev_b32 v2, 4, v2
    v_mul_u32_u24 v3, {8*RUN}, v1
    v_add3_u32 {v('ORL')}, v3, v2, s45
    v_mul_u32_u24 v3, 1152, v1
    v_add3_u32 {v('OUTL')}, v3, v2, s68
    s_lshl_b32 s45, s69, 13
    s_and_b32 s68, s3, 1
    s_lshl_b32 s46, s68, 3
    s_add_u32 s45, s45, s46
    v_add_u32 {v('ZW')}, s45, {v('vL')}
    s_lshl_b32 s46, s68, 10
    v_add_u32 {v('ZR0')}, s46, {v('vL')}
    v_lshlrev_b32 v1, 3, {v('lane')}
    v_add_u32 v1, {ZB + 32768}, v1
    s_lshl_b32 s45, s3, 9
    v_add_u32 {v('Z8W')}, s45, v1
    s_lshl_b32 s46, s68, 9
    v_add_u32 {v('Z8R')}, s46, v1
    """
    deferred = []
    for ins in lines(dtxt):
        if ins.startswith("s_addc"): deferred[-1].append(ins)
        else: deferred.append([ins])
    dwritten = set()
    dpending = {ins.split()[1].rstrip(",") for g in deferred for ins in g if ins.split()[1].rstrip(",") not in ("v1","v2","v3","v4","s45","s46","s68")}
    def defer_run(n=1):
        for _ in range(n):
            if deferred:
                for ins in deferred.pop(0): a(ins)
    def defer_need(reg):
        while any(ins.split()[1].rstrip(",") == reg for g in deferred for ins in g): defer_run()
    defer_run(13)
    stamp("i2")
    a("s_barrier")
    a("s_cbranch_vccz L_preA")
    a("s_setprio 3"); issue("B", plan["preB"]); a("s_setprio 1")
    a("s_branch L_pre")
    a("L_preA:")
    a("s_setprio 2"); issue("A", plan["preA"])
    a("L_pre:")
    stamp("i3")
    MF = []
    for s, (c, i) in enumerate(STEPS):
        for T in range(4):
            for p in range(8 if T < 2 else 1):
                u = 8*T + p if T < 2 else 14 + T
                if c == "k": B = ("K", p if T < 2 else 8)
                else: B = ("F", c, p - i + 4) if T < 2 else ("H", s)
                MF.append((u, ("W", s, T), B, c == "k"))
    NM = len(MF)
    first = {}; last = {}
    for idx, (u, A, B, k16) in enumerate(MF):
        for key in (A, B):
            first.setdefault(key, idx); last[key] = idx
    OKEYS = [("O", u, kap) for u in range(3) for kap in range(5)]
    for j, key in enumerate(OKEYS): first[key] = NM + j; last[key] = 10**6
    def tag_of(key):
        if key[0] == "W": return [f"s{key[1]}"]
        if key[0] == "K": return ["xo"]
        if key[0] == "O": return ["wot"] if key[2] == 4 else [f"o{key[2]//2}"]
        c = key[1] if key[0] == "F" else STEPS[key[1]][0]
        return ["xo"] if c == "o" else [f"x{c}", "h0" if c == 0 else "xh"]
    def reads_of(key, reg):
        if key[0] == "W":
            s, T = key[1], key[2]; rho = s % 6
            if s == KS: return [f"ds_read_b64_tr_b16 {rng('a', reg, 2)}, {v('T',T)} offset:{(rho%3)*SLOT}"]
            return [f"ds_read_b64_tr_b16 {rng('a', reg+2*e2, 2)}, {v('WB',4*(rho//3)+T)} offset:{(rho%3)*SLOT + e2*2304}" for e2 in range(2)]
        if key[0] == "K":
            p = key[1]
            return [f"ds_read_b64 {rng('a',reg,2)}, {v('XK')} offset:{p*64}" if p < 8 else f"ds_read_b64 {rng('a',reg,2)}, {v('XKH')}"]
        if key[0] == "F":
            c, q = key[1], key[2]
            if c == "o": return [f"ds_read_b128 {rng('a',reg,4)}, {v('T',5) if q==8 else v('T',4)} offset:{q*64 + (32 if q>=8 else 0)}"]
            return [f"ds_read_b128 {rng('a',reg,4)}, {v('XF')} offset:{XCO(c) + q*128 + (32 if q>=8 else 0)}"]
        if key[0] == "H":
            c, i = STEPS[key[1]]
            if c == "o": return [f"ds_read_b128 {rng('a',reg,4)}, {v('T',6+i//2)}"]
            return [f"ds_read_b128 {rng('a',reg,4)}, {v('XH',4-i)} offset:{XCO(c)}"]
        u, kap = key[1], key[2]
        toff = 32*u if u < 2 else 256
        if kap == 4:
            return [f"ds_read_b64_tr_b16 {rng('a', reg, 2)}, {v('OT0') if u < 2 else v('OT8')} offset:{toff}",
                    f"v_accvgpr_write_b32 a{reg+2}, 0", f"v_accvgpr_write_b32 a{reg+3}, 0"]
        return [f"ds_read_b64_tr_b16 {rng('a', reg+2*e2, 2)}, {v('OB0') if u < 2 else v('OB8')} offset:{OPOS[kap//2] - OPOS[1] + (kap&1)*9216 + e2*4608 + toff}" for e2 in range(2)]
    order = sorted(first, key=lambda k: first[k])
    free = [4*j for j in range(32)]; loc = {}; avail = set(); pend = []
    def pick(i, look_):
        reserve = 0
        for key in order:
            if key in loc: continue
            if first[key] - i > look_: return False
            if not all(t in avail for t in tag_of(key)):
                reserve += 1; continue
            if len(free) - reserve <= 0: return False
            loc[key] = free.pop(0)
            pend.extend((key, x) for x in reads_of(key, loc[key]))
            return True
        return False
    def feed(i, budget):
        n = 0
        while True:
            if not pend and not pick(i, look): break
            urgent = first[pend[0][0]] - i <= 9
            if n >= (max(budget, 3) if urgent else budget): break
            E(pend.pop(0)[1]); n += 1
    ool = Asm()
    def outofline(lab, fn):
        nonlocal a
        main = a; a = ool
        a(f"{lab}:"); fn(); a(f"s_branch {lab}r")
        a = main
        a(f"{lab}r:")
    sync = {x[0]: x for x in plan["sync"]}
    for i in range(NM):
        if i in sync:
            _, itemsA, tags, itemsB = sync[i]
            lg = ""
            if tags is not None:
                while pend: E(pend.pop(0)[1])
                if "ALLX" in tags:
                    for key in order:
                        if key[0] in "FHK" and key not in loc:
                            loc[key] = free.pop(0); emit(reads_of(key, loc[key])); print("late x read", key, file=sys.stderr)
                n = lneed(None if "ALLX" in tags else {"tr"})
                if n is not None: lg = f" lgkmcnt({n})"
            nB = vwait("B", tags) if tags else None
            nA0 = vwait("A", tags) if tags else None
            if itemsA or nA0 != nB:
                a(f"s_cbranch_vccz L_dA{i}")
                if nB is not None or lg: a("s_waitcnt" + (f" vmcnt({nB})" if nB is not None else "") + lg)
                def blk():
                    issue("A", itemsA)
                    nA = vwait("A", tags) if tags else None
                    if nA is not None or lg: a("s_waitcnt" + (f" vmcnt({nA})" if nA is not None else "") + lg)
                outofline(f"L_dA{i}", blk)
            elif nB is not None or lg:
                a("s_waitcnt" + (f" vmcnt({nB})" if nB is not None else "") + lg)
            if tags is not None:
                for t in tags:
                    if t in ("x0","x1","x2","x3","wot"): assert t in vq["A"] and t in vq["B"], t
                    elif t != "ALLX": assert t in vq["A"] or t in vq["B"], t
                a("s_barrier")
                stamp(f"b{i//18}" + (f"_{i%18}" if i % 18 else ""))
                avail.update(tags)
                for s in range(23):
                    if all(("W", s, T) in loc for T in range(4)): released.add(s)
                if i > max(last[k] for k in last if k[0] in "FH" and tag_of(k)[0] in ("x0","x1")): released.add("x01")
            if i == 0: feed(0, 6)
            if itemsB:
                a(f"s_cbranch_vccnz L_dB{i}")
                outofline(f"L_dB{i}", lambda: (a("s_setprio 3"), issue("B", itemsB), a("s_setprio 1")))
        u, A, B, k16 = MF[i]
        while any(k not in loc or any(p[0] == k for p in pend) for k in (A, B)):
            if not pend: assert pick(i, 0), (i, A, B)
            E(pend.pop(0)[1])
        D = rng('v', acc(u), 4)
        C = "0" if i < 18 else D
        if k16: E(f"v_mfma_f32_16x16x16_bf16 {D}, {rng('a',loc[A],2)}, {rng('a',loc[B],2)}, {C}")
        else: E(f"v_mfma_f32_16x16x32_bf16 {D}, {rng('a',loc[A],4)}, {rng('a',loc[B],4)}, {C}")
        for key in (A, B):
            if last[key] == i: free.append(loc[key])
        n0 = len(a.lines)
        feed(i, 1)
        if i >= 18 and len(a.lines) == n0: defer_run(1)
        if i == S(10): defer_run(20 if len(deferred) > 42 else 0); assert len(deferred) <= 42, len(deferred)
        if i == S(19): assert not deferred
    while pend or pick(NM, 100):
        E(pend.pop(0)[1])
    stamp()
    a("s_setprio 0")
    def aO(u, kap): return loc[("O", u, kap)]
    def act(pairs, dst, plain=False):
        L = []
        P = [(F+2*h, G+2*h) for (F,G) in pairs for h in range(2)]
        def tmp(k): return V['T'] + 2*k if k < 4 else 2 + 2*(k-4)
        if plain:
            for (F,G) in P: L += [f"v_mul_f32 v{F}, s32, v{F}", f"v_mul_f32 v{F+1}, s32, v{F+1}"]
            for (F,G) in P: L += [f"v_mul_f32 v{G}, s32, v{G}", f"v_mul_f32 v{G+1}, s32, v{G+1}"]
        else:
            for (F,G) in P: L.append(f"v_pk_mul_f32 v[{F}:{F+1}], v[{F}:{F+1}], s[32:33]")
            for (F,G) in P: L.append(f"v_pk_mul_f32 v[{G}:{G+1}], v[{G}:{G+1}], s[32:33]")
        for (F,G) in P: L += [f"v_min_f32 v{F}, s36, v{F}", f"v_min_f32 v{F+1}, s36, v{F+1}"]
        for (F,G) in P: L += [f"v_exp_f32 v{G}, v{G}", f"v_exp_f32 v{G+1}, v{G+1}"]
        for (F,G) in P: L += [f"v_exp_f32 v{F}, v{F}", f"v_exp_f32 v{F+1}, v{F+1}"]
        if plain == 2:
            El = [(F+h, G+h, tmp(k)+h) for k,(F,G) in enumerate(P) for h in range(2)]
            for (F,G,T) in El: L.append(f"v_fma_f32 v{T}, v{F}, v{F}, 1.0")
            for (F,G,T) in El: L.append(f"v_fma_f32 v{G}, v{T}, v{G}, v{T}")
            for (F,G,T) in El: L.append(f"v_rcp_f32 v{G}, v{G}")
            for (F,G,T) in El: L.append(f"v_fma_f32 v{F}, -v{F}, v{F}, 1.0")
            for (F,G,T) in El: L.append(f"v_mul_f32 v{F}, v{F}, v{G}")
            for k,(F,G) in enumerate(P): L.append(f"v_cvt_pk_bf16_f32 v{dst[k]}, v{F}, v{F+1}")
            return L
        for k,(F,G) in enumerate(P):
            T = tmp(k); L.append(f"v_pk_fma_f32 v[{T}:{T+1}], v[{F}:{F+1}], v[{F}:{F+1}], s[34:35]")
        for k,(F,G) in enumerate(P):
            T = tmp(k); L.append(f"v_pk_fma_f32 v[{G}:{G+1}], v[{T}:{T+1}], v[{G}:{G+1}], v[{T}:{T+1}]")
        for (F,G) in P: L += [f"v_rcp_f32 v{G}, v{G}", f"v_rcp_f32 v{G+1}, v{G+1}"]
        for (F,G) in P: L.append(f"v_pk_fma_f32 v[{F}:{F+1}], v[{F}:{F+1}], v[{F}:{F+1}], s[34:35] neg_lo:[1,0,0] neg_hi:[1,0,0]")
        for (F,G) in P: L.append(f"v_pk_mul_f32 v[{F}:{F+1}], v[{F}:{F+1}], v[{G}:{G+1}]")
        for k,(F,G) in enumerate(P): L.append(f"v_cvt_pk_bf16_f32 v{dst[k]}, v{F}, v{F+1}")
        return L
    ZR_ = [free.pop(0) for _ in range(5)]
    def aZ(kap): return ZR_[kap]
    AS_ = [free.pop(0) for _ in range(2)]
    D8 = acc(16)
    def actg(g):
        p0, p1 = 2*g, 2*g+1
        return act([(acc(p0), acc(8+p0)), (acc(p1), acc(8+p1))], [acc(8+p0), acc(8+p0)+1, acc(8+p1), acc(8+p1)+1])
    def zwrite(g):
        return f"ds_write2st64_b64 {v('ZW')}, {rng('v', acc(8+2*g), 2)}, {rng('v', acc(9+2*g), 2)} offset0:{4*g} offset1:{4*g+2}"
    def zreads(g):
        L = [f"ds_read_b128 {rng('a', aZ(kap), 4)}, {v('ZR0')} offset:{kap*8192 + 2*g*1024}" for kap in range(4)]
        L.append(f"ds_read_b64 {rng('a', aZ(4), 2)}, {v('Z8R')} offset:{2*g*512}")
        return L
    def oacc(g, u): return acc(2*g + u)
    def chain(Dr, u):
        D = rng('v', Dr, 4)
        return [f"v_mfma_f32_16x16x32_bf16 {D}, {rng('a',aO(u,kap),4)}, {rng('a',aZ(kap),4)}, {'0' if kap == 0 else D}" for kap in range(5)]
    def gm(g): return chain(oacc(g,0), 0) + chain(oacc(g,1), 1)
    def gout(g, u):
        A_ = oacc(g, u)
        return [f"v_cvt_pk_bf16_f32 v{A_}, v{A_}, v{A_+1}", f"v_cvt_pk_bf16_f32 v{A_+1}, v{A_+2}, v{A_+3}",
                f"ds_write_b64 {v('OW0')}, {rng('v', A_, 2)} offset:{g*8*RUN + 32*u}"]
    def g8m(g):
        a(f"s_cmp_eq_u32 s69, {g & 1}")
        a(f"s_cbranch_scc1 L_g8m{g}")
        outofline(f"L_g8m{g}", lambda: [a(x) for x in chain(D8, 2)])
    def g8w(g):
        a(f"s_cbranch_scc1 L_g8w{g}")
        outofline(f"L_g8w{g}", lambda: [a(x) for x in (f"v_cvt_pk_bf16_f32 v{D8}, v{D8}, v{D8+1}", f"v_cvt_pk_bf16_f32 v{D8+1}, v{D8+2}, v{D8+3}",
                                                       f"ds_write_b64 {v('OW8')}, {rng('v', D8, 2)} offset:{g*8*RUN}")])
    def sread(g): return f"ds_read_b128 {rng('a', AS_[g&1], 4)}, {v('OR')} offset:{g*8*RUN}"
    def sstore(g):
        n = lneed(opregs(rng('a', AS_[g&1], 4)))
        if n is not None: a(f"s_waitcnt lgkmcnt({n})")
        a(f"buffer_store_dwordx4 {rng('a', AS_[g&1], 4)}, {v('OUT')}, s[24:27], 0 offen offset:{g*1152}{store_mod}")
    def endbeat(j):
        lneed(None)
        a("s_waitcnt lgkmcnt(0)")
        a("s_barrier")
        stamp(f"e{j}")
    assert {18, 19} <= released
    def L0(plain): return act([(acc(0), acc(8)), (acc(1), acc(9)), (acc(16), acc(17))], [acc(8), acc(8)+1, acc(9), acc(9)+1, V['Z'], V['Z']+1], plain=plain)
    a("s_nop 1")
    a(f"v_accvgpr_write_b32 a{aZ(4)+2}, 0")
    a(f"v_accvgpr_write_b32 a{aZ(4)+3}, 0")
    if plain0 == "AB":
        a("s_cbranch_vccnz L_l0B")
        for ins in L0(2): a(ins)
        a("s_branch L_l0J")
        a("L_l0B:")
        for ins in L0(0): a(ins)
        a("L_l0J:")
    else:
        for ins in L0(plain0): a(ins)
    E(f"ds_write_b64 {v('Z8W')}, {rng('v', V['Z'], 2)}")
    for j in range(1, 5):
        g = j - 1
        M = gm(g)
        if j <= 3:
            L = actg(j)
            b = bdelay
            slots = {x32at + i: [i] for i in range(9)}
            slots[x32at + 8].append(9)
            rq = []
            for k, ins in enumerate(L):
                if k == 0: E(zwrite(j-1))
                if k == 3 and j >= 2: g8w(g-1)
                if bB is not None and k == bB:
                    a(f"s_cbranch_vccz L_eb{j}")
                    a("s_waitcnt lgkmcnt(0)"); a("s_barrier"); stamp(f"e{j-1}")
                    if stamps and f"e{j-1}" in stamps: stamp_n[0] -= 1
                    a(f"L_eb{j}:")
                if k == b:
                    if bB is not None: a(f"s_cbranch_vccnz L_ea{j}")
                    endbeat(j-1)
                    if bB is not None: a(f"L_ea{j}:")
                    rq = zreads(g) + ([sread(j-2)] if j >= 2 else [])
                if k >= b and (k - b) % rstep == 0 and rq: E(rq.pop(0))
                a(ins)
                for m in slots.get(k, []): E(M[m])
                if k == 50 and j >= 2: sstore(j-2)
                if k == x32at + 8: g8m(g)
                if k == 53: emit(gout(g, 0))
                if k == 57: emit(gout(g, 1))
            assert not rq
        else:
            E(zwrite(j-1))
            g8w(g-1)
            endbeat(j-1)
            emit(zreads(g))
            E(sread(j-2))
            for mm in M: E(mm)
            g8m(g)
            sstore(j-2)
            emit(gout(g, 0))
            a("s_nop 1")
            emit(gout(g, 1))
            g8w(g)
    endbeat(4)
    E(sread(3))
    E(f"ds_read_b128 {rng('a', AS_[0], 4)}, {v('ORL')} offset:1024")
    sstore(3)
    a("s_waitcnt lgkmcnt(0)")
    a("s_mov_b32 exec_hi, 0")
    a(f"buffer_store_dwordx4 {rng('a', AS_[0], 4)}, {v('OUTL')}, s[24:27], 0 offen offset:1024{store_mod}")
    if stamps:
        stamp()
        a("s_waitcnt vmcnt(0)")
        stamp()
        emit_stamps2(a, stamp_n[0], v('lane'))
    a("L_end:")
    a("s_endpgm")
    a.lines += ool.lines
    a("L_last:")
    return wrap(a.text(), 250, 512, LDS_BYTES, vgpr=256, sgpr=102, accum=128)

HEAD = [
      (S(0),    [],                 ["xo","s0"],       []),
      (S(0,12), [],                 ["s1"],            []),
      (S(1,12), ["s3"],             ["s2"],            ["s4"]),
      (S(2,10), ["s5"],             ["x0","h0","s3"],  ["s6"]),
      (S(3,10), ["s7","x1","xh"],   ["s4","s5"],       ["x1"]),
      (S(5),    ["s8"],             ["s6","s7"],       ["s9","s11"]),
      (S(7),    ["s10","wb","x2"],  ["s8","s9","x1","xh"], ["x2"]),
      (S(9),    ["s12"],            ["s10","s11"],     ["s13","s15"]),
      (S(11),   ["s14"],            ["s12","s13","x2"],["wo","wot","s17"]),
      (S(13),   ["wot","s16"],      ["s14","s15"],     ["x3","s19"]),
      (S(15),   ["x3","s18"],       ["s16","s17"],     ["s21"]),
]
T4 = dict(preA = ["s2","x0","h0"], preB = ["s1","x0"], warows=64,
    sync = HEAD + [
      (S(17),   ["s20","o0"],       ["s18","s19","x3"],["s22","o1"]),
      (S(19),   [],                 ["s20","s21","s22","o0","o1","wot"], []),
    ])
if __name__ == "__main__":
    Q = ["b0","b11","b17","b19","e0","e1","e2","e3","e4"]
    open("v17.s","w").write(gen(plan=T4))
    open("v17a_st.s","w").write(gen(stamps=Q, plan=T4))
    open("v17b_st.s","w").write(gen(stamps=Q, plan=T4, plain0=1))
    open("v17c_st.s","w").write(gen(stamps=Q, plan=T4, bB=1))
```

```python
import sys, struct
from asmlib import *

SLOT = 18432
XBASE = 6 * SLOT
XCH = 8960
def XCO(c): return c * XCH + (512 if c >= 2 else 0)
XO = XBASE + 4 * XCH + 512
XDUMMY = XO + 4608
WOT = XO + 5 * 1024
LDS_BYTES = WOT + 4608
ZB = 0
OIMG = 2 * SLOT
OPOS = [XBASE, 5 * SLOT]
RUN = 1168
LOG2E = 1.4426950408889634
def f2u(x): return struct.unpack("<I", struct.pack("<f", x))[0]
def rng(p, b, n): return f"{p}[{b}:{b+n-1}]"
def lines(s): return [l.split(';')[0].strip() for l in s.split("\n") if l.split(';')[0].strip()]
def magic(d, n, sh=20):
    m = -(-(1 << sh) // d)
    assert all(((L*m) >> sh) == L//d for L in range(n)) and m < (1 << 24) and m*n < (1 << 32)
    return m, sh

STEPS = [("k",4), ("o",0), ("o",2)] + [(c,i) for c in range(4) for i in range(5)]
def S(s, k=0): return 18*s + k
PLAN = dict(preA = ["s2","x0","h0"], preB = ["s1","x0"], warows = 64, zbar = S(17,6),
    sync = [
      (S(0),    [],                 ["xo","s0"],       []),
      (S(0,12), [],                 ["s1"],            []),
      (S(1,12), ["s3"],             ["s2"],            ["s4"]),
      (S(2,10), ["s5"],             ["x0","h0","s3"],  ["s6"]),
      (S(3,10), ["s7","x1","xh"],   ["s4","s5"],       ["x1"]),
      (S(5),    ["s8"],             ["s6","s7"],       ["s9","s11"]),
      (S(7),    ["s10","wb","x2"],  ["s8","s9","x1","xh"], ["x2"]),
      (S(9),    ["s12"],            ["s10","s11"],     ["s13","s15"]),
      (S(11),   ["s14"],            ["s12","s13","x2"],["wo","wot","s17"]),
      (S(13),   ["wot","s16"],      ["s14","s15"],     ["x3","s19"]),
      (S(14,9), ["x3","s18"],       ["s16","s17"],     ["s20"]),
      (S(16),   ["s21"],            ["s18","s19","x3"],["s22"]),
      (S(17,6), ["o0"],             ["s20","s21","s22"], ["o1"]),
      (S(23)-44, [],                ["o0","o1","wot"], []),
    ])
def bars(plan, n=11): return [f"b{e[0]//18}" + (f"_{e[0]%18}" if e[0]%18 else "") for e in plan["sync"] if e[2] is not None][:n-1] + ["b17_6"]

def gen(stamps=False, store_mod=" sc0 sc1", xmod=" nt", plan=PLAN, look=60, tail=5, vbud=8, rt=False, bBB=8, heavy="A", aext=0):
    a = Asm()
    KS = 0
    ACC = 8
    def acc(u): return ACC + 4*u
    V = {}
    nxt = [88]
    def valloc(name, n=1, align=1):
        while nxt[0] % align: nxt[0] += 1
        V[name] = nxt[0]; nxt[0] += n
        assert nxt[0] <= 128, name
        return V[name]
    for nm in ["lane","vW","vL"]: valloc(nm)
    valloc("WB", 8)
    valloc("XF"); valloc("XH", 3); valloc("XK"); valloc("XC")
    for nm in ["OB0","OB8","ZW","ZR0","Z8","OW0","OW8","OR","ORL","OUT","OUTL"]: valloc(nm)
    valloc("T", 10)
    v = lambda nm, i=0: f"v{V[nm]+i}"
    JUNK = "v5"
    stamp_n = [0]
    def stamp(name="x"):
        if stamps and (name == "x" or name in stamps):
            k = stamp_n[0]; stamp_n[0] += 1
            a(f"{'s_memrealtime' if rt else 's_memtime'} s[{SB+2*k}:{SB+1+2*k}]")
    vq = []
    def vwait(tags):
        idx = [i for i,t in enumerate(vq) if t in tags]
        return len(vq) - 1 - max(idx) if idx else None
    lq = []
    def opregs(tok):
        tok = tok.strip()
        if tok[0] not in 'av' or '[' not in tok: return set()
        r = tok[2:-1].split(':')
        return {(tok[0], k) for k in range(int(r[0]), int(r[1])+1)}
    def lneed(regs):
        last = -1
        for i, t in enumerate(lq):
            if regs is None or (t & regs): last = i
        if last < 0: return None
        n = min(len(lq) - 1 - last, 14)
        del lq[:len(lq)-n]
        return n
    deferred = []
    def defer_run(n=1):
        for _ in range(n):
            if deferred:
                for ins in deferred.pop(0): a(ins)
    def defer_need(reg):
        while any(ins.split()[1].rstrip(",") == reg for g in deferred for ins in g): defer_run()
    def E(ins):
        if ins.startswith('ds_') and len(lq) >= 15:
            a("s_waitcnt lgkmcnt(8)"); del lq[:len(lq)-8]; E(ins)
        elif ins.startswith('ds_read'):
            defer_need(ins.split(',')[1].split()[0])
            r = opregs(ins.split(None,1)[1].split(',')[0])
            if "_tr_" in ins: r.add("tr")
            lq.append(r); a(ins)
        elif ins.startswith('ds_write'):
            lq.append({('w', 0)}); a(ins)
        elif ins.startswith('v_mfma'):
            ops = ins.split(None, 1)[1].split(',')
            n = lneed(opregs(ops[1]) | opregs(ops[2]))
            if n is not None: a(f"s_waitcnt lgkmcnt({n})")
            a(ins)
        else: a(ins)
    def emit(grp):
        for ins in grp: E(ins)
    def five(vo, srd, m0, so):
        L = [m0, so, "s_mov_b32 exec_hi, 0", f"buffer_load_dwordx4 {vo}, {srd}, s30 offen lds", "s_mov_b32 exec_hi, -1"]
        return L + [f"buffer_load_dwordx4 {vo}, {srd}, s30 offen offset:{512+1024*j} lds" for j in range(4)]
    WAL = (16 + plan['warows']) * 576 // 128
    WAN = -(-5*WAL // 31)
    WBL = 648 - WAL
    WBN = -(-5*WBL // (31*4))
    def item(name):
        if name[0] == "s":
            n = int(name[1:]); c, i = STEPS[n]
            m0 = f"s_add_u32 m0, s29, {(n % 6) * SLOT}"
            if c == "k": so = f"s_add_u32 s30, s29, {4*82944 + 128*576}"
            elif c == "o": so = f"s_add_u32 s30, s49, {i*82944 + 128*576}"
            else: so = f"s_add_u32 s30, s29, {i*82944 + c*SLOT}"
            return five(v('vW'), "s[16:19]", m0, so)
        if name in ("o0", "o1"):
            h = int(name[1])
            return five(v('vL'), "s[20:23]", f"s_add_u32 m0, s29, {OPOS[h]}", f"s_add_u32 s30, s29, {h*SLOT}")
        if name in ("x0","x1","x2","x3"):
            c = int(name[1])
            return [f"s_add_u32 m0, s43, {XCO(c)}", f"s_movk_i32 s30, {64*c}", f"buffer_load_dwordx4 {v('XC')}, s[12:15], s30 offen{xmod} lds"]
        if name in ("xh", "h0"):
            if name == "xh":
                pre = f"""
                s_mul_i32 s48, s3, {XCH}
                s_and_b32 s30, s3, 2
                s_lshl_b32 s30, s30, 8
                s_add_u32 s48, s48, s30
                s_add_u32 s48, s48, {XBASE + 8*1056}
                s_mul_i32 s30, s3, {64 - 4608}
                s_add_u32 s30, s30, {8*4608}
                s_cmp_lg_u32 s3, 0"""
            else:
                pre = f"""
                s_mov_b32 s48, {XBASE + 8*1056}
                s_movk_i32 s30, {5*4608}
                s_cmp_eq_u32 s3, 3"""
            return lines(pre + f"""
            s_cselect_b32 m0, s48, {XDUMMY}
            s_cselect_b32 s30, s30, 0x7ff00000
            v_add_u32 v7, s30, {v('XC')}
            s_mov_b32 exec_hi, 0
            buffer_load_dwordx4 v7, s[12:15], 0 offen{xmod} lds
            s_mov_b32 exec_hi, -1""")
        if name == "wb":
            m, sh = magic(WBL, 32*4*WBN + 64)
            return lines(f"""
            s_lshl_b32 s30, s70, 2
            s_add_u32 s30, s30, s3
            s_mul_i32 s30, s30, {WBN}
            v_add_u32 v6, s30, {v('lane')}
            v_mul_u32_u24 v7, {m}, v6
            v_lshrrev_b32 v7, {sh}, v7
            v_mul_u32_u24 v7, {WAL*128}, v7
            v_lshl_add_u32 v6, v6, 7, v7
            s_mov_b32 s30, {WAL*128 - 9216}
            s_mov_b64 exec, {(1<<WBN)-1}
            buffer_load_dword {JUNK}, v6, s[16:19], s30 offen
            s_mov_b64 exec, -1""")
        if name == "wo":
            return lines(f"""
            s_lshl_b32 s30, s70, 2
            s_add_u32 s30, s30, s3
            s_mul_i32 s30, s30, {3*128}
            s_sub_u32 s30, s30, {4*3*128}
            v_lshl_add_u32 v6, {v('lane')}, 7, s30
            s_mov_b64 exec, 7
            buffer_load_dword {JUNK}, v6, s[20:23], 0 offen
            s_mov_b64 exec, -1""")
        if name == "wot":
            return lines(f"""
            s_mul_i32 s30, s3, 576
            s_add_u32 m0, s30, {WOT}
            s_add_u32 s30, s30, {128*288}
            s_mov_b32 exec_hi, 15
            buffer_load_dwordx4 {v('vL')}, s[20:23], s30 offen lds
            s_mov_b32 exec_hi, -1""")
        raise ValueError(name)
    def issue(names):
        for nm in names:
            if nm in ("wo", "wot", "o0", "o1"): defer_need(v('vL'))
            for ins in item(nm):
                a(ins)
                if ins.startswith("buffer_load"): vq.append(nm)
    if stamps: a("s_memrealtime s[40:41]")
    stamp()
    mA, shA = magic(WAL, 32*WAN+64)
    m34, sh34 = magic(34, 320, 16)
    a(f"""
    s_load_dwordx8 s[4:11], s[0:1], 0
    s_cmp_ge_u32 s2, 250
    s_cbranch_scc1 L_end
    v_lshrrev_b32 v1, 6, v0
    v_and_b32 {v('lane')}, 63, v0
    s_cmp_ge_u32 s2, 125
    v_readfirstlane_b32 s3, v1
    s_cselect_b32 s31, 125, 0
    s_cselect_b32 s37, 4608000, 0
    s_sub_u32 s31, s2, s31
    s_mul_i32 s31, s31, {128*288}
    s_sub_u32 s38, s31, {8*288}
    s_and_b32 s44, s3, 3
    s_mul_i32 s29, s44, 4608             ; s29 = (w&3)*4608
    s_cmp_eq_u32 s3, 2                   ; odd image piece: waves 4..7 -> 0..3, wave 2 -> 4
    s_cselect_b32 s45, 4, s44
    s_lshl_b32 s30, s45, 6
    v_add_u32 v2, s30, {v('lane')}
    v_mul_u32_u24 v3, {m34}, v2
    v_lshrrev_b32 v3, {sh34}, v3
    v_lshrrev_b32 v2, 1, v2
    v_sub_u32 v2, v2, v3
    v_mul_u32_u24 v2, 288, v2
    v_and_b32 v3, 1, v0
    v_lshl_add_u32 v2, v3, 4, v2
    v_add_u32 v7, s38, v2
    s_lshl_b32 s39, s45, 10
    s_add_u32 m0, s39, {XO}
    s_and_b32 s45, s3, 1
    s_lshl_b32 s45, s45, 1
    v_xor_b32 v2, s45, {v('lane')}
    v_lshlrev_b32 {v('vW')}, 4, v2
    s_lshr_b32 s70, s2, 3
    s_mul_i32 s30, s70, {WAN}
    v_add_u32 v6, s30, {v('lane')}
    v_mul_u32_u24 v2, {mA}, v6
    v_lshrrev_b32 v2, {shA}, v2
    v_mul_u32_u24 v2, {82944 - WAL*128}, v2
    v_lshl_add_u32 v6, v6, 7, v2
    v_subrev_u32 v6, 9216, v6            ; first-needed W lines, spread over 31 workgroups
    s_mov_b32 s14, 4608000
    s_mov_b32 s15, 0x20000
    s_mov_b32 s18, 414720
    s_mov_b32 s19, 0x20000
    s_movk_i32 s30, 256
    s_waitcnt lgkmcnt(0)
    s_add_u32 s12, s4, s37
    s_addc_u32 s13, s5, 0
    s_mov_b32 s16, s6
    s_mov_b32 s17, s7
    s_cmp_ge_u32 s3, 4
    s_cbranch_scc1 L_odd
    s_cmp_lt_u32 s3, 2
    s_cbranch_scc1 L_k16
    s_mov_b32 exec_hi, 0
    s_cmp_eq_u32 s3, 2
    s_cbranch_scc1 L_odd
    s_mov_b32 exec_hi, {(1 << (WAN-32)) - 1}
    buffer_load_dword {JUNK}, v6, s[16:19], 0 offen
    L_codepf:
    s_getpc_b64 s[50:51]
    s_mul_i32 s30, s70, 768
    s_min_u32 s30, s30, L_last-L_codepf-768
    v_lshl_add_u32 v6, {v('lane')}, 7, s30
    s_mov_b64 exec, 127
    global_load_dword {JUNK}, v6, s[50:51] offset:-8
    s_branch L_fdone
    L_k16:
    """)
    for ins in item("s0"): a(ins)
    a(f"""
    s_branch L_fdone
    L_odd:
    buffer_load_dwordx4 v7, s[12:15], s30 offen{xmod} lds
    L_fdone:
    s_mov_b64 exec, -1
    """)
    stamp("i1")
    a(f"""
    s_mul_i32 s28, s3, 4608
    v_lshrrev_b32 v6, 2, {v('lane')}
    v_mul_u32_u24 v6, 288, v6
    v_and_b32 v3, 3, v0
    v_lshl_add_u32 v6, v3, 4, v6
    s_add_u32 s30, s28, s38
    v_add_u32 {v('XC')}, s30, v6
    s_mul_i32 s43, s3, 1056
    s_add_u32 s43, s43, {XBASE}
    s_bfe_u32 s49, s3, 0x10001
    s_mul_i32 s49, s49, {82944 - 9216}
    s_add_u32 s49, s49, s29              ; s49 = ((w>>1)&1)*82944 + (w&1)*4608
    v_and_b32 v1, 15, {v('lane')}              ; n
    v_lshrrev_b32 v2, 4, {v('lane')}           ; kq
    v_add_u32 v4, 4, v1
    v_and_b32 v3, 7, v4                        ; alpha
    v_bfe_u32 v4, v4, 3, 1                     ; pi
    v_lshrrev_b32 {v('T',1)}, 2, v1            ; r
    v_and_b32 {v('T',2)}, 3, v1                ; c
    v_and_b32 v7, 1, v2                        ; kq1
    v_lshrrev_b32 v1, 1, v2                    ; kqh
    v_lshl_add_u32 {v('T',0)}, v2, 3, {v('T',1)}
    v_mul_u32_u24 {v('T',0)}, 576, {v('T',0)}
    v_lshl_add_u32 {v('T',0)}, {v('T',2)}, 3, {v('T',0)}      ; (8kq+r)*576 + c*8
    v_lshl_add_u32 v6, v2, 2, {v('T',1)}
    v_mul_u32_u24 v6, 288, v6
    v_lshl_add_u32 {v('OB8')}, {v('T',2)}, 3, v6              ; (4kq+r)*288 + c*8
    v_lshlrev_b32 {v('T',1)}, 5, v7                           ; 32*kq1
    s_lshl_b32 s45, s3, 5
    v_xor_b32 {v('T',2)}, s45, {v('T',1)}
    v_add_u32 {v('WB',0)}, {v('T',0)}, {v('T',2)}
    s_add_u32 s45, s45, 288
    v_xor_b32 {v('T',2)}, s45, {v('T',1)}
    v_add_u32 {v('WB',1)}, {v('T',0)}, {v('T',2)}
    v_xor_b32 {v('T',2)}, 256, {v('T',1)}
    v_add_u32 {v('WB',2)}, {v('T',0)}, {v('T',2)}
    v_xor_b32 {v('T',2)}, 544, {v('T',1)}
    v_add_u32 {v('WB',3)}, {v('T',0)}, {v('T',2)}
    v_mul_u32_u24 v6, 544, v3
    v_lshl_add_u32 v6, v4, 5, v6
    v_lshl_add_u32 v6, v7, 4, v6
    v_add_u32 v6, {XO}, v6
    v_lshl_add_u32 {v('XK')}, v1, 3, v6
    v_lshlrev_b32 {v('T',0)}, 6, v1
    v_sub_u32 {v('T',4)}, v6, {v('T',0)}               ; T4 = XP
    v_lshlrev_b32 {v('T',0)}, 5, v1
    v_sub_u32 {v('T',5)}, {v('T',4)}, {v('T',0)}       ; T5 = XP8
    v_mul_u32_u24 v7, 1056, v3
    v_lshl_add_u32 v7, v4, 6, v7
    v_lshl_add_u32 v7, v2, 4, v7
    v_add_u32 {v('XF')}, {XBASE}, v7
    v_mul_u32_u24 v7, 6912, v1
    v_sub_u32 {v('T',0)}, {v('WB',0)}, v7
    v_sub_u32 {v('T',1)}, {v('WB',1)}, v7
    v_add_u32 {v('WB',4)}, {3*SLOT}, {v('WB',0)}
    v_add_u32 {v('WB',5)}, {3*SLOT}, {v('WB',1)}
    s_cmp_ge_u32 s3, 4
    s_cbranch_scc1 L_grpB
    """)
    def act(pairs, dst, plain=False):
        L = []
        P = [(F+2*h, G+2*h) for (F,G) in pairs for h in range(2)]
        if plain:
            El = [(F+h, G+h) for (F,G) in P for h in range(2)]
            for (F,G) in El: L.append(f"v_mul_f32 v{F}, s52, v{F}")
            for (F,G) in El: L.append(f"v_mul_f32 v{G}, s32, v{G}")
            for (F,G) in El: L.append(f"v_exp_f32 v{F}, v{F}")
            for (F,G) in El: L.append(f"v_exp_f32 v{G}, v{G}")
            for (F,G) in El: L.append(f"v_fma_f32 v{F}, v{F}, s34, s34 clamp")
            for (F,G) in El: L.append(f"v_fma_f32 v{G}, v{F}, v{G}, v{F}")
            for (F,G) in El: L.append(f"v_rcp_f32 v{G}, v{G}")
            for (F,G) in El: L.append(f"v_sub_f32 v{F}, s54, v{F}")
            for (F,G) in El: L.append(f"v_mul_f32 v{F}, v{F}, v{G}")
        else:
            for (F,G) in P: L.append(f"v_pk_mul_f32 v[{F}:{F+1}], v[{F}:{F+1}], s[52:53]")
            for (F,G) in P: L.append(f"v_pk_mul_f32 v[{G}:{G+1}], v[{G}:{G+1}], s[32:33]")
            for (F,G) in P: L += [f"v_exp_f32 v{F}, v{F}", f"v_exp_f32 v{F+1}, v{F+1}"]
            for (F,G) in P: L += [f"v_exp_f32 v{G}, v{G}", f"v_exp_f32 v{G+1}, v{G+1}"]
            for (F,G) in P: L.append(f"v_pk_fma_f32 v[{F}:{F+1}], v[{F}:{F+1}], s[34:35], s[34:35] clamp")
            for (F,G) in P: L.append(f"v_pk_fma_f32 v[{G}:{G+1}], v[{F}:{F+1}], v[{G}:{G+1}], v[{F}:{F+1}]")
            for (F,G) in P: L += [f"v_rcp_f32 v{G}, v{G}", f"v_rcp_f32 v{G+1}, v{G+1}"]
            for (F,G) in P: L.append(f"v_pk_add_f32 v[{F}:{F+1}], s[54:55], v[{F}:{F+1}] neg_lo:[0,1] neg_hi:[0,1]")
            for (F,G) in P: L.append(f"v_pk_mul_f32 v[{F}:{F+1}], v[{F}:{F+1}], v[{G}:{G+1}]")
        for k,(F,G) in enumerate(P): L.append(f"v_cvt_pk_bf16_f32 v{dst[k]}, v{F}, v{F+1}")
        return L
    def actg(g, plain=False):
        p0, p1 = 2*g, 2*g+1
        return act([(acc(p0), acc(8+p0)), (acc(p1), acc(8+p1))], [acc(8+p0), acc(8+p0)+1, acc(8+p1), acc(8+p1)+1], plain)
    def zwrite(g):
        return f"ds_write2st64_b64 {v('ZW')}, {rng('v', acc(8+2*g), 2)}, {rng('v', acc(9+2*g), 2)} offset0:{4*g} offset1:{4*g+2}"
    sn0 = stamp_n[0]
    reldone = {}

    def stream(G):
        hv = (G == heavy)
        NT = 4 if hv else 2
        SL = 20 if hv else 16
        def P(pos): return (pos * SL) // 18
        vq.clear(); lq.clear(); stamp_n[0] = sn0
        vq.append("s0" if G == "A" else "xo")
        if hv:
            a(f"""
            v_sub_u32 {v('T',2)}, {v('WB',2)}, v7
            v_sub_u32 {v('T',3)}, {v('WB',3)}, v7
            s_lshl_b32 s45, s44, 7
            v_add_u32 {v('XH',0)}, s45, {v('XK')}
            """)
            for j in range(2, 6):
                a(f"""
                s_lshl_b32 s45, s44, 1
                s_add_u32 s45, s45, {j}
                v_sub_u32 v7, s45, v1
                v_lshrrev_b32 {v('T',4+j)}, 3, v7
                v_lshl_add_u32 v7, v7, 6, v6
                v_lshl_add_u32 {v('T',4+j)}, {v('T',4+j)}, 5, v7
                """)
        d = ""
        if hv:
            d += f"v_add_u32 {v('WB',6)}, {3*SLOT}, {v('WB',2)}\nv_add_u32 {v('WB',7)}, {3*SLOT}, {v('WB',3)}\n"
            for jj in (2, 1, 0):
                d += f"""
                s_add_u32 s45, s44, {jj}
                s_lshr_b32 s68, s45, 2
                s_lshl3_add_u32 s45, s45, s68
                s_lshl_b32 s45, s45, 5
                v_add_u32 {v('XH',jj)}, s45, {v('XF')}"""
        d += f"""
        s_mov_b32 s20, s8
        s_mov_b32 s21, s9
        s_mov_b32 s22, 41472
        s_mov_b32 s23, 0x20000
        v_lshlrev_b32 {v('vL')}, 4, {v('lane')}
        s_mov_b32 s32, {f2u(-LOG2E):#x}
        s_mov_b32 s33, {f2u(-LOG2E):#x}
        s_mov_b32 s34, {f2u(2.0**-32):#x}
        s_mov_b32 s35, {f2u(2.0**-32):#x}
        s_mov_b32 s52, {f2u(-2*LOG2E):#x}
        s_mov_b32 s53, {f2u(-2*LOG2E):#x}
        s_mov_b32 s54, {f2u(2.0**-31):#x}
        s_mov_b32 s55, {f2u(2.0**-31):#x}
        s_lshr_b32 s69, s3, 1
        s_lshl_b32 s45, s44, 6
        v_add_u32 {v('OB8')}, {OPOS[1]}, {v('OB8')}
        v_add_u32 {v('OB0')}, s45, {v('OB8')}
        v_mul_u32_u24 v3, {RUN}, v3
        v_mul_u32_u24 v4, 288, v4
        v_lshl_add_u32 v3, v2, 3, v3
        v_add_u32 v3, v3, v4
        s_and_b32 s47, s3, 1
        """
        if G == "B": d += "s_xor_b32 s46, s47, 1\n"
        else: d += "s_mov_b32 s46, s47\n"
        d += f"""
        s_mul_i32 s68, s46, 576
        s_add_u32 s45, s45, s68
        s_add_u32 s45, s45, {OIMG}
        v_add_u32 {v('OW0')}, s45, v3
        s_lshl_b32 s45, s46, 10
        v_add_u32 {v('ZR0')}, s45, {v('vL')}
        s_lshl_b32 s45, s46, 9
        s_add_u32 s45, s45, {ZB + 32768}
        v_lshl_add_u32 {v('Z8')}, {v('lane')}, 3, s45
        s_lshl_b32 s45, s69, 13
        s_lshl3_add_u32 s45, s47, s45
        v_add_u32 {v('ZW')}, s45, {v('vL')}
        """
        if G == "A":
            d += f"""
            s_add_u32 s45, s68, {OIMG + 256}
            v_add_u32 {v('OW8')}, s45, v3
            v_xor_b32 {v('OR')}, 1024, {v('ZR0')}
            v_xor_b32 {v('ORL')}, 512, {v('Z8')}
            s_mul_i32 s45, s47, -1152
            s_add_u32 s45, s45, 576
            v_add_u32 {v('OUT')}, s45, {v('OW0')}
            """
        else:
            d += f"""
            s_add_u32 s24, s10, s37
            s_addc_u32 s25, s11, 0
            s_mov_b32 s26, 4608000
            s_mov_b32 s27, 0x20000
            s_mul_i32 s45, s44, {2*RUN}
            s_add_u32 s45, s45, {OIMG}
            v_add_u32 {v('OR')}, s45, {v('vL')}
            s_lshl_b32 s68, s29, 1
            s_add_u32 s68, s68, s31
            v_add_u32 {v('OUT')}, s68, {v('vL')}
            v_bfe_u32 v1, {v('lane')}, 3, 2
            v_and_b32 v2, 7, {v('lane')}
            v_lshlrev_b32 v2, 4, v2
            v_mul_u32_u24 v3, {8*RUN}, v1
            v_add3_u32 {v('ORL')}, v3, v2, s45
            v_mul_u32_u24 v3, 1152, v1
            v_add3_u32 {v('OUTL')}, v3, v2, s68
            v_lshrrev_b32 v1, 5, {v('lane')}
            v_mul_u32_u24 v2, {RUN}, v1
            v_add_u32 {v('ORL')}, {v('ORL')}, v2
            v_mul_u32_u24 v2, 4608, v1
            v_add_u32 {v('OUTL')}, {v('OUTL')}, v2
            s_movk_i32 s56, 4608
            """
        if hv:
            d += f"""
            s_lshl_b32 s45, s44, 10
            s_add_u32 s45, s45, {ZB + 32768}
            v_lshl_add_u32 {v('XK')}, {v('lane')}, 3, s45
            """
        deferred.clear()
        stamp("i2")
        a("s_barrier")
        if G == "B":
            a("s_setprio 3"); issue(plan["preB"]); a("s_setprio 1")
        else:
            a("s_setprio 2"); issue(plan["preA"])
        stamp("i3")
        MF = []
        for s, (c, i) in enumerate(STEPS):
            for T in range(NT):
                for p in range(8 if T < 2 else 2):
                    u = 8*T + p if T < 2 else 12 + 2*T + p
                    if c == "k": B = ("K", p if T < 2 else 8 + p)
                    else: B = ("F" if T < 2 else "H", c, p - i + 4)
                    MF.append((u, ("W", s, T), B, c == "k"))
        NM = len(MF)
        t0 = SL * (23 - tail)
        TL = MF[t0:]
        uorder = ([16, 18, 17, 19] if hv else []) + [u for p in range(8) for u in (p, 8+p)]
        MF[t0:] = [m for u in uorder for m in TL if m[0] == u]
        vfill = []
        n8 = 4*tail if hv else 0
        if hv:
            vfill += [(t0 + n8 + 3, x) for x in act([(acc(16), acc(18)), (acc(17), acc(19))], [acc(18), acc(18)+1, acc(19), acc(19)+1], True)]
            vfill += [(0, f"ds_write2st64_b64 {v('XK')}, {rng('v', acc(18), 2)}, {rng('v', acc(19), 2)} offset0:0 offset1:1")]
        vfill += [(t0 + n8 + 4*tail + 3, x) for x in actg(0, True)] + [(0, zwrite(0))]
        if G == "A": vfill += [(t0 + n8 + 8*tail + 3, x) for x in actg(1, True)[:aext]]
        first = {}; last = {}
        for idx, (u, A, B, k16) in enumerate(MF):
            for key in (A, B):
                first.setdefault(key, idx); last[key] = idx
        OKEYS = [("O", u, kap) for u in range(3 if G == "A" else 2) for kap in range(5)]
        for j, key in enumerate(OKEYS): first[key] = NM + j; last[key] = 10**6
        def tag_of(key):
            if key[0] == "W": return [f"s{key[1]}"]
            if key[0] == "K": return ["xo"]
            if key[0] == "O": return ["wot"] if key[2] == 4 else [f"o{key[2]//2}"]
            c = key[1]
            return ["xo"] if c == "o" else [f"x{c}", "h0" if c == 0 else "xh"]
        def reads_of(key, reg):
            if key[0] == "W":
                s, T = key[1], key[2]; rho = s % 6
                if s == KS: return [f"ds_read_b64_tr_b16 {rng('a', reg, 2)}, {v('T',T)} offset:{(rho%3)*SLOT}"]
                return [f"ds_read_b64_tr_b16 {rng('a', reg+2*e2, 2)}, {v('WB',4*(rho//3)+T)} offset:{(rho%3)*SLOT + e2*2304}" for e2 in range(2)]
            if key[0] == "K":
                p = key[1]
                return [f"ds_read_b64 {rng('a',reg,2)}, {v('XK') if p < 8 else v('XH',0)} offset:{(p%8)*64}"]
            if key[0] == "F":
                c, q = key[1], key[2]
                if c == "o": return [f"ds_read_b128 {rng('a',reg,4)}, {v('T',5) if q==8 else v('T',4)} offset:{q*64 + (32 if q>=8 else 0)}"]
                return [f"ds_read_b128 {rng('a',reg,4)}, {v('XF')} offset:{XCO(c) + q*128 + (32 if q>=8 else 0)}"]
            if key[0] == "H":
                c, j = key[1], key[2]
                if c == "o": return [f"ds_read_b128 {rng('a',reg,4)}, {v('T',4+j)}"]
                return [f"ds_read_b128 {rng('a',reg,4)}, {v('XH',j//2)} offset:{XCO(c) + (j&1)*128}"]
            u, kap = key[1], key[2]
            toff = 32*u if u < 2 else 256
            base = v('OB0') if u < 2 else v('OB8')
            if kap == 4:
                return [f"ds_read_b64_tr_b16 {rng('a', reg, 2)}, {base} offset:{WOT - OPOS[1] + toff}",
                        f"v_accvgpr_write_b32 a{reg+2}, 0", f"v_accvgpr_write_b32 a{reg+3}, 0"]
            return [f"ds_read_b64_tr_b16 {rng('a', reg+2*e2, 2)}, {base} offset:{OPOS[kap//2] - OPOS[1] + (kap&1)*9216 + e2*4608 + toff}" for e2 in range(2)]
        need_rel = []
        prevb = 0
        def dl(nm, pos):
            n = int(nm[1:]) - 6 if nm[0] == "s" else (17 if nm == "o1" else ("x01" if nm == "o0" else -1))
            if n == "x01": need_rel.append((n, pos))
            elif n >= 0:
                need_rel.append((n, pos))
                for T in range(NT): first[("W", n, T)] = min(first[("W", n, T)], P(pos) - 2)
        for pos, iA, tags, iB in plan["sync"]:
            for nm in iA: dl(nm, prevb)
            if tags is not None: prevb = pos
            for nm in iB: dl(nm, prevb)
        dl("s24", plan["zbar"]); dl("s25", plan["zbar"])
        order = sorted(first, key=lambda k: first[k])
        free = [4*j for j in range(32)]; loc = {}; avail = set(); pend = []
        def pick(i, look_):
            reserve = 0
            for key in order:
                if key in loc: continue
                if first[key] - i > look_: return False
                if not all(t in avail for t in tag_of(key)):
                    reserve += 1; continue
                if len(free) - reserve <= 0: return False
                loc[key] = free.pop(0)
                pend.extend((key, x) for x in reads_of(key, loc[key]))
                return True
            return False
        def feed(i, budget):
            n = 0
            while True:
                if not pend and not pick(i, look): break
                urgent = first[pend[0][0]] - i <= 9
                if n >= (max(budget, 3) if urgent else budget): break
                E(pend.pop(0)[1]); n += 1
        mpos = {}; rel = {}
        sync = {P(x[0]): x for x in plan["sync"]}
        assert len(sync) == len(plan["sync"])
        for i in range(NM):
            if i in sync:
                pos, itemsA, tags, itemsB = sync[i]
                if tags is not None:
                    while pend: E(pend.pop(0)[1])
                if G == "A": issue(itemsA)
                if tags is not None:
                    n = lneed({"tr"}); nv = vwait(tags)
                    w = (f" vmcnt({nv})" if nv is not None else "") + (f" lgkmcnt({n})" if n is not None else "")
                    if w: a("s_waitcnt" + w)
                    for t in tags:
                        if t in ("x0","x1","x2","x3","wot"): assert t in vq, t
                    a("s_barrier")
                    stamp(f"b{pos//18}" + (f"_{pos%18}" if pos % 18 else ""))
                    avail.update(tags)
                    for s in range(23):
                        if all(("W", s, T) in loc for T in range(NT)): rel.setdefault(s, pos)
                    if i > max(last[k] for k in last if k[0] in "FH" and k[1] in (0, 1)): rel.setdefault("x01", pos)
                if i == 0: feed(0, 6)
                if G == "B" and itemsB:
                    a("s_setprio 3"); issue(itemsB); a("s_setprio 1")
            u, A, B, k16 = MF[i]
            while any(k not in loc or any(p[0] == k for p in pend) for k in (A, B)):
                if not pend: assert pick(i, 0), (i, A, B)
                E(pend.pop(0)[1])
            D = rng('v', acc(u), 4)
            C = "0" if i < SL else D
            if k16: E(f"v_mfma_f32_16x16x16_bf16 {D}, {rng('a',loc[A],2)}, {rng('a',loc[B],2)}, {C}")
            else: E(f"v_mfma_f32_16x16x32_bf16 {D}, {rng('a',loc[A],4)}, {rng('a',loc[B],4)}, {C}")
            for key in (A, B):
                if last[key] == i: free.append(loc[key])
            mpos[u] = len(a.lines)
            bud = vbud
            while vfill and vfill[0][0] <= i and bud > 0:
                ins = vfill.pop(0)[1]
                for uu in range(20):
                    if any(f"v{acc(uu)+r}" in ins.replace(",", " ").split() for r in range(4)):
                        while len(a.lines) - mpos[uu] < 8: a("s_nop 0")
                if ins.startswith("ds_write"): assert i >= P(plan["zbar"])
                bud -= 8 if ins.startswith(("v_exp", "v_rcp")) else 4
                E(ins)
            if i == SL - 1:
                for ins in lines(d):
                    if ins.startswith("s_addc"): deferred[-1].append(ins)
                    else: deferred.append([ins])
            n0 = len(a.lines)
            feed(i, 1)
            if len(a.lines) == n0: defer_run(1)
            if i == P(S(17)): print(G, "deferred left", len(deferred), file=sys.stderr); defer_run(100)
        for (n, pos) in need_rel: assert rel[n] <= pos, (G, n, pos, rel[n])
        while pend or pick(NM, 100):
            E(pend.pop(0)[1])
        stamp()
        print(G, "left over valu:", len(vfill), file=sys.stderr)
        for _, ins in vfill: E(ins)
        def aO(u, kap): return loc[("O", u, kap)]
        ZR_ = [[free.pop(0) for _ in range(5)] for pb in range(2)]
        def aZ(pb, kap): return ZR_[pb][kap]
        AS_ = [free.pop(0) for _ in range(4)]
        D8 = acc(16)
        def zreads(g, pb):
            L = [f"ds_read_b128 {rng('a', aZ(pb,kap), 4)}, {v('OR') if pb else v('ZR0')} offset:{kap*8192 + 2*g*1024}" for kap in range(4)]
            L.append(f"ds_read_b64 {rng('a', aZ(pb,4), 2)}, {v('ORL') if pb else v('Z8')} offset:{2*g*512}")
            return L
        def oacc(g, pb, u): return acc(2*g + u + 8*pb)
        def chain(Dr, u, pb):
            D = rng('v', Dr, 4)
            return [f"v_mfma_f32_16x16x32_bf16 {D}, {rng('a',aO(u,kap),4)}, {rng('a',aZ(pb,kap),4)}, {'0' if kap == 0 else D}" for kap in range(5)]
        def gm(g): return [m for pb in range(2) for u in range(2) for m in chain(oacc(g,pb,u), u, pb)]
        def gout(g, pb, u):
            A_ = oacc(g, pb, u)
            return [f"v_cvt_pk_bf16_f32 v{A_}, v{A_}, v{A_+1}", f"v_cvt_pk_bf16_f32 v{A_+1}, v{A_+2}, v{A_+3}",
                    f"ds_write_b64 {v('OUT') if pb else v('OW0')}, {rng('v', A_, 2)} offset:{g*8*RUN + 32*u}"]
        def g8m(g):
            a(f"s_cmp_eq_u32 s69, {g & 1}")
            a(f"s_cbranch_scc0 L_g8m{g}")
            for x in chain(D8, 2, 0): a(x)
            a(f"L_g8m{g}:")
        def g8w(g):
            a(f"s_cbranch_scc0 L_g8w{g}")
            for x in (f"v_cvt_pk_bf16_f32 v{D8}, v{D8}, v{D8+1}", f"v_cvt_pk_bf16_f32 v{D8+1}, v{D8+2}, v{D8+3}",
                      f"ds_write_b64 {v('OW8')}, {rng('v', D8, 2)} offset:{g*8*RUN}"): a(x)
            a(f"L_g8w{g}:")
        def sread(g, r): return f"ds_read_b128 {rng('a', AS_[2*(g&1)+r], 4)}, {v('OR')} offset:{(g*8+r)*RUN}"
        def sstore(g, r):
            n = lneed(opregs(rng('a', AS_[2*(g&1)+r], 4)))
            if n is not None: a(f"s_waitcnt lgkmcnt({n})")
            a(f"buffer_store_dwordx4 {rng('a', AS_[2*(g&1)+r], 4)}, {v('OUT')}, s[24:27], {'s56' if r else '0'} offen offset:{g*1152}{store_mod}")
        def endbeat(j):
            lneed(None)
            a("s_waitcnt lgkmcnt(0)")
            a("s_barrier")
            stamp(f"e{j}")
        for pb in range(2 if G == "A" else 1):
            a(f"v_accvgpr_write_b32 a{aZ(pb,4)+2}, 0")
            a(f"v_accvgpr_write_b32 a{aZ(pb,4)+3}, 0")
        if G == "A":
            assert aext in (0, 32)
            if aext == 0:
                for ins in actg(1)[:24]: a(ins)
            for j in range(1, 4):
                g = j - 1
                M = gm(g)
                L = actg(j)[24:] + ["ZW"] + (actg(j+1)[:24] if j < 3 else [])
                endbeat(g)
                mslots = [7,8,9,10,11,12,13,14,15,15] + (list(range(36, 46)) if j < 3 else [15]*10)
                for k, ins in enumerate(L):
                    if k == 0: emit(zreads(g, 0))
                    if k == (4 if j == 3 else 20): emit(zreads(g, 1))
                    if ins == "ZW": E(zwrite(j))
                    else: a(ins)
                    for m in range(20):
                        if mslots[m] == k: E(M[m])
                    if k == 15: g8m(g)
                    if k == 19: emit(gout(g, 0, 0))
                    if k == 23: emit(gout(g, 0, 1))
                    if j < 3:
                        if k == 31: g8w(g)
                        if k == 46: emit(gout(g, 1, 0))
                        if k == 50: emit(gout(g, 1, 1))
                    else:
                        if k == 21: emit(gout(g, 1, 0))
                        if k == 25: emit(gout(g, 1, 1))
                        if k == 27: g8w(g)
            endbeat(3)
            emit(zreads(3, 0))
            for mm in gm(3)[:10]: E(mm)
            g8m(3)
            a("s_nop 0"); emit(gout(3, 0, 0)); a("s_nop 1"); emit(gout(3, 0, 1))
            g8w(3)
            endbeat(4)
        else:
            a("s_setprio 0")
            for j in range(1, 4):
                g = j - 1
                if j > 1: E(zwrite(g))
                for k, ins in enumerate(actg(j)):
                    if k == bBB: endbeat(g)
                    if j >= 2:
                        if k == bBB + 2: E(sread(j-2, 0))
                        if k == bBB + 5: E(sread(j-2, 1))
                        if k == bBB + 20: sstore(j-2, 0)
                        if k == bBB + 26: sstore(j-2, 1)
                    a(ins)
            E(zwrite(3))
            endbeat(3)
            E(sread(2, 0)); E(sread(2, 1))
            emit(zreads(3, 0))
            sstore(2, 0); sstore(2, 1)
            for mm in gm(3)[:10]: E(mm)
            a("s_nop 2"); emit(gout(3, 0, 0)); a("s_nop 1"); emit(gout(3, 0, 1))
            endbeat(4)
            E(sread(3, 0)); E(sread(3, 1))
            E(f"ds_read_b128 {rng('a', AS_[0], 4)}, {v('ORL')} offset:1024")
            sstore(3, 0); sstore(3, 1)
            a("s_waitcnt lgkmcnt(0)")
            a(f"buffer_store_dwordx4 {rng('a', AS_[0], 4)}, {v('OUTL')}, s[24:27], 0 offen offset:1024{store_mod}")
    seen = set(["xo","s0"] + plan["preA"] + plan["preB"])
    for pos, iA, tags, iB in plan["sync"]:
        seen.update(iA)
        for t in tags or []: assert t in seen, t
        seen.update(iB)
    stream("A")
    a("s_branch L_fin" if stamps else "s_endpgm")
    a("L_grpB:")
    stream("B")
    a("L_fin:")
    if stamps:
        stamp()
        a("s_waitcnt vmcnt(0)")
        stamp()
        emit_stamps2(a, stamp_n[0], v('lane'))
    a("L_end:")
    a("L_last:")
    return wrap(a.text(), 250, 512, LDS_BYTES, vgpr=256, sgpr=102, accum=128)

if __name__ == "__main__":
    open("v23.s","w").write(gen())
```
